```python
import torch

def _softmax(x, axis=-1):
    return torch.softmax(x, dim=axis)
def _gelu(x):
    return torch.nn.functional.gelu(x, approximate="tanh")
def _silu(x):
    return torch.nn.functional.silu(x)
def _sigmoid(x):
    return torch.sigmoid(x)
def _layernorm(x, axis=-1, eps=1e-5):
    m = x.mean(dim=axis, keepdim=True)
    v = x.var(dim=axis, keepdim=True, unbiased=False)
    return (x - m) / torch.sqrt(v + eps)
def _scatter_add(tgt, idx, src, axis=0):
    return tgt.clone().index_add_(axis, idx, src)
def _segment_sum(src, seg, n):
    out = torch.zeros((n,) + src.shape[1:], dtype=src.dtype)
    return out.index_add_(0, seg, src)
def _pad(x, pw):
    flat = tuple(v for pair in reversed(pw) for v in pair)
    return torch.nn.functional.pad(x, flat)

kernel_name = 'sequential_preLN__sliding_block__moe_arch_mod__prompt'

def setup_inputs():

    _w = (lambda a: (lambda t: t.to(torch.bfloat16) if t.is_floating_point() else t)(torch.as_tensor(a)))
    def _A_setup():
        B, S, D = 1, 2048, 512
        return {
            "x": _w((lambda *s: torch.randn(*s, dtype=torch.bfloat16) * 0.05)(B, S, D)),
            "wqkv": _w((lambda *s: torch.randn(*s, dtype=torch.bfloat16) * 0.05)(D, 3 * D)),
            "wo": _w((lambda *s: torch.randn(*s, dtype=torch.bfloat16) * 0.05)(D, D)),
        }
    _A_in = _A_setup()

    def _B_setup():
        B, S, D, F, C = 1, 2048, 512, 1376, 2
        return {
            "x": _w((lambda *s: torch.randn(*s, dtype=torch.bfloat16) * 0.05)(B, S, D)),
            "w_r": _w((lambda *s: torch.randn(*s, dtype=torch.bfloat16) * 0.05)(D)),
            "w_gate": _w((lambda *s: torch.randn(*s, dtype=torch.bfloat16) * 0.05)(D, F)),
            "w_up": _w((lambda *s: torch.randn(*s, dtype=torch.bfloat16) * 0.05)(D, F)),
            "w_down": _w((lambda *s: torch.randn(*s, dtype=torch.bfloat16) * 0.05)(F, D)),
        }
    _B_in = _B_setup()

    return {
        "A_x": _A_in["x"],
        "A_wqkv": _A_in["wqkv"],
        "A_wo": _A_in["wo"],
        "B_x": _B_in["x"],
        "B_w_r": _B_in["w_r"],
        "B_w_gate": _B_in["w_gate"],
        "B_w_up": _B_in["w_up"],
        "B_w_down": _B_in["w_down"],
    }

def reference(A_x, A_wqkv, A_wo, B_x, B_w_r, B_w_gate, B_w_up, B_w_down):
    def _A_ref(x, wqkv, wo):
        B, S, D = x.shape
        H = 32; Dh = D // H; W = 256
        qkv = (lambda x, *d: x.permute(*d))((x @ wqkv).reshape(B, S, 3, H, Dh), 2, 0, 3, 1, 4)
        q, k, v = qkv[0], qkv[1], qkv[2]
        scores = torch.einsum("bhqd,bhkd->bhqk", q, k) * (Dh ** -0.5)
        idx = torch.arange(S)
        mask = (idx[:, None] - idx[None, :] >= 0) & (idx[:, None] - idx[None, :] < W)
        scores = torch.where(mask[None, None], scores, -1e9)
        p = _softmax(scores, axis=-1)
        o = torch.einsum("bhqk,bhkd->bhqd", p, v)
        return (lambda x, *d: x.permute(*d))(o, 0, 2, 1, 3).reshape(B, S, D) @ wo

    def _B_ref(x, w_r, w_gate, w_up, w_down):
        B, S, D = x.shape
        C = 2
        r = x @ w_r
        idx = torch.argsort(-r, axis=-1)[:, :C]
        idx_e = (lambda x, n, axis: torch.repeat_interleave(x, n, dim=axis))(idx.reshape(B, C, 1), D, axis=2)
        x_sel = (lambda x, i, axis: torch.take_along_dim(x, i, dim=axis))(x, idx_e, axis=1)
        g = _silu(x_sel @ w_gate)
        u = x_sel @ w_up
        y = (g * u) @ w_down
        r_sel = _sigmoid((lambda x, i, axis: torch.take_along_dim(x, i, dim=axis))(r, idx, axis=1))
        y = y * r_sel.reshape(B, C, 1)
        b_off = (torch.arange(B) * S).reshape(B, 1)
        flat_idx = (idx + b_off).reshape(B * C)
        zero = (x * 0.0).reshape(B * S, D)
        upd = _scatter_add(zero, flat_idx, y.reshape(B * C, D), axis=0)
        return x + upd.reshape(B, S, D)

    x = A_x
    h = x + _A_ref(_layernorm(x, axis=-1), A_wqkv, A_wo)
    h2 = h + _B_ref(_layernorm(h, axis=-1), B_w_r, B_w_gate, B_w_up, B_w_down)
    return h2
```

```python
import re

TRANS = ("v_exp_f32", "v_log_f32", "v_rcp_f32", "v_rsq_f32", "v_sqrt_f32", "v_sin_f32", "v_cos_f32", "v_rcp_iflag_f32")

def _regs(op):
    op = op.strip()
    neg = op.startswith("-")
    if neg: op = op[1:]
    m = re.match(r"^abs\((.*)\)$", op) or re.match(r"^\|(.*)\|$", op)
    if m: op = m.group(1)
    m = re.match(r"^([vas])(\d+)$", op)
    if m: return {(m.group(1), int(m.group(2)))}
    m = re.match(r"^([vas])\[(\d+):(\d+)\]$", op)
    if m: return {(m.group(1), i) for i in range(int(m.group(2)), int(m.group(3)) + 1)}
    if op == "vcc": return {("s", 106), ("s", 107)}
    if op == "vcc_lo": return {("s", 106)}
    if op == "vcc_hi": return {("s", 107)}
    if op == "exec": return {("s", 126), ("s", 127)}
    if op == "exec_lo": return {("s", 126)}
    if op == "exec_hi": return {("s", 127)}
    if op == "m0": return {("s", 124)}
    return set()

def _split_ops(s):
    out, depth, cur = [], 0, ""
    for ch in s:
        if ch in "[(": depth += 1
        if ch in "])": depth -= 1
        if ch == "," and depth == 0:
            out.append(cur.strip()); cur = ""
        else:
            cur += ch
    if cur.strip(): out.append(cur.strip())
    return out

class Ins:
    def __init__(self, text):
        self.text = text
        t = text.split(";")[0].strip()
        self.label = t.endswith(":")
        self.directive = t.startswith(".")
        self.mn = ""
        self.dst, self.src = set(), set()
        self.srcC = set(); self.srcAB = set()
        self.kind = "other"
        self.states = 1
        if self.label or self.directive or not t:
            self.states = 0
            return
        parts = t.split(None, 1)
        mn = parts[0]; self.mn = mn
        rest = parts[1] if len(parts) > 1 else ""
        ops = _split_ops(rest)
        mods = ""
        if ops:
            toks = ops[-1].split()
            if len(toks) > 1 and not ops[-1].startswith("abs("):
                ops[-1] = toks[0]; mods = " ".join(toks[1:])
        self.mods = mods
        self.ops = ops
        R = [_regs(o) for o in ops]
        allr = set().union(*R) if R else set()
        if mn == "s_nop":
            self.kind = "nop"; self.states = int(ops[0], 0) + 1; return
        if mn.startswith("v_mfma"):
            self.kind = "mfma"
            self.dst = R[0]; self.srcAB = R[1] | R[2]; self.srcC = R[3]; self.src = self.srcAB | self.srcC
            self.passes = 8 if "32x32" in mn else 4
            if "32x32x2_f32" in mn: self.passes = 16
            if "16x16x4_f32" in mn: self.passes = 8
            self.sgemm = mn.endswith("_f32") and ("x2_f32" in mn or "x4_f32" in mn)
            return
        if mn.startswith("v_"):
            self.kind = "valu"
            base = re.sub(r"_(e32|e64|dpp|sdwa)$", "", mn)
            self.base = base
            self.trans = base in TRANS
            self.dpp = ("dpp" in mn) or ("row_" in mods) or ("quad_perm" in mods)
            self.dot = base.startswith("v_dot")
            if base.startswith("v_permlane") and "swap" in base:
                self.dst = R[0] | R[1]; self.src = R[0] | R[1]; self.perm = True; return
            self.perm = base.startswith("v_permlane")
            if base.startswith("v_cmpx"):
                self.dst = R[0] | _regs("exec"); self.src = set().union(*R[1:]); return
            nd = 1
            if base in ("v_add_co_u32", "v_sub_co_u32", "v_subrev_co_u32", "v_addc_co_u32", "v_subb_co_u32", "v_div_scale_f32", "v_mad_u64_u32"):
                nd = 2
            self.dst = set().union(*R[:nd]); self.src = set().union(*R[nd:]) if len(R) > nd else set()
            if base in ("v_fmac_f32", "v_dot2c_f32_bf16", "v_dot2c_f32_f16", "v_writelane_b32") or self.dpp:
                self.src |= R[0]
            return
        if mn.startswith("buffer_") or mn.startswith("global_") or mn.startswith("flat_"):
            self.kind = "vmem"
            self.lds = " lds" in (" " + mods) or "_lds_" in mn
            if mn in ("buffer_wbl2", "buffer_inv"):
                return
            if "load" in mn and not self.lds:
                self.dst = R[0]; self.src = set().union(*R[1:])
            elif "atomic" in mn and "sc0" in mods:
                self.src = allr
                self.dst = R[0]
            else:
                self.src = allr
                if self.lds: self.src |= _regs("m0")
            self.store = "store" in mn
            self.wide = self.store and ("x4" in mn or "x3" in mn)
            if self.wide:
                self.data = R[0] if mn.startswith("buffer_") else R[1]
            return
        if mn.startswith("ds_"):
            self.kind = "ds"
            if "read" in mn or "permute" in mn or "swizzle" in mn or mn.endswith("_rtn") or "_rtn_" in mn:
                self.dst = R[0]; self.src = set().union(*R[1:]) if len(R) > 1 else set()
            else:
                self.src = allr
            return
        if mn.startswith("s_"):
            self.kind = "salu"
            if mn.startswith(("s_cmp", "s_cbranch", "s_branch", "s_waitcnt", "s_barrier", "s_endpgm", "s_sleep", "s_setprio", "s_bitcmp")):
                self.src = allr
                if mn.startswith(("s_cbranch", "s_branch")): self.kind = "branch"
                return
            if mn.startswith(("s_load", "s_buffer_load", "s_memtime", "s_memrealtime", "s_atomic")):
                self.kind = "smem"
            self.dst = R[0] if R else set(); self.src = set().union(*R[1:]) if len(R) > 1 else set()
            if "saveexec" in mn: self.dst |= _regs("exec")
            return

def isv(r): return r[0] in "va"
def iss(r): return r[0] == "s"
EXEC = {("s", 126), ("s", 127)}

def need(p, c):
    n = 0
    if p.kind == "valu":
        vd = {r for r in p.dst if isv(r)}
        sd = {r for r in p.dst if iss(r)}
        if c.kind == "mfma":
            if vd & c.src: n = max(n, 3 if p.dot else 2)
            if sd & EXEC: n = max(n, 4)
        if c.kind == "valu":
            if p.trans and not c.trans and (vd & (c.src | c.dst)): n = max(n, 1)
            if p.trans and c.trans and (vd & c.src): n = max(n, 1)
            if (c.perm or c.dpp) and (vd & c.src): n = max(n, 2)
            if c.base in ("v_readlane_b32", "v_readfirstlane_b32") and (vd & c.src): n = max(n, 1)
            if sd & c.src:
                n = max(n, 4 if c.base in ("v_readlane_b32", "v_writelane_b32") else 2)
            if c.base in ("v_cndmask_b32", "v_addc_co_u32", "v_subb_co_u32") and (sd & {("s", 106), ("s", 107)}): n = max(n, 2)
            if c.base == "v_div_fmas_f32" and (sd & {("s", 106), ("s", 107)}): n = max(n, 4)
            if sd & EXEC:
                if c.dpp: n = max(n, 5)
                if c.perm or c.base in ("v_readlane_b32", "v_readfirstlane_b32", "v_writelane_b32"): n = max(n, 4)
            if p.dot and (vd & (c.src | c.dst)):
                if not (c.base == p.base and not (vd & (_regs(c.ops[1]) | _regs(c.ops[2])))):
                    n = max(n, 3)
            if ("op_sel" in p.mods or "sdwa" in p.mn) and (vd & (c.src | c.dst)): n = max(n, 1)
        if c.kind in ("vmem", "ds"):
            if sd & c.src: n = max(n, 5)
            if p.dot and (vd & c.src): n = max(n, 3)
            if p.trans and (vd & c.src): n = max(n, 1)
        if c.kind in ("salu", "branch", "smem"):
            if sd & c.src: n = max(n, 1)
            if c.mn in ("s_cbranch_vccz", "s_cbranch_vccnz") and (sd & {("s", 106), ("s", 107)}): n = max(n, 5)
            if c.mn in ("s_cbranch_execz", "s_cbranch_execnz") and (sd & EXEC): n = max(n, 5)
    if p.kind == "salu":
        if ("s", 124) in p.dst and c.kind == "vmem" and c.lds: n = max(n, 1)
    if p.kind == "mfma":
        P = p.passes
        ab = {2: 5, 4: 8, 8: 12, 16: 20}[P]
        ov = {2: 4, 4: 6, 8: 10, 16: 18}[P]
        war = {2: 1, 4: 3, 8: 7, 16: 15}[P]
        if p.sgemm:
            ab = {2: 4, 4: 6, 8: 10, 16: 18}[P]; ov = {2: 2, 4: 4, 8: 8, 16: 16}[P]
        if c.kind == "mfma":
            if p.dst & c.srcAB: n = max(n, ab)
            if p.dst & c.srcC:
                if not (p.dst == c.srcC and p.passes == c.passes): n = max(n, ov)
            elif p.dst & c.dst:
                n = max(n, ov)
        elif c.kind in ("valu", "vmem", "ds"):
            if p.dst & (c.src | c.dst): n = max(n, ab)
            if c.kind == "valu" and (p.srcC & c.dst): n = max(n, war)
            if c.kind in ("vmem", "ds") and (p.srcC & c.dst): n = max(n, war)
    if p.kind == "vmem" and getattr(p, "wide", False):
        if c.kind in ("valu", "mfma") and (p.data & c.dst): n = max(n, 2)
        elif (p.data & c.dst): n = max(n, 1)
    return n

class Asm:
    def __init__(self):
        self.lines = []
    def __call__(self, text):
        for t in text.strip("\n").split("\n"):
            t = t.strip()
            if t: self.lines.append(t)
    def label(self, name):
        self.lines.append(name + ":")
    def flush(self):
        self.lines.append("@flush")
    def finish(self):
        out = []
        hist = []
        nnop = 0
        for t in self.lines:
            if t == "@flush":
                w = 0
                for p, d in hist:
                    q = 0
                    if p.kind == "mfma": q = {2: 5, 4: 8, 8: 12, 16: 20}[p.passes]
                    elif p.kind == "valu": q = 5
                    elif p.kind == "vmem": q = 2
                    elif p.kind == "salu": q = 1
                    w = max(w, q - d)
                while w > 0:
                    k = min(w, 16)
                    out.append("s_nop %d" % (k - 1)); w -= k
                hist = []
                continue
            c = Ins(t)
            if c.states == 0:
                out.append(t); continue
            w = 0
            for p, d in hist:
                w = max(w, need(p, c) - d)
            if w > 0:
                nnop += w
                ww = w
                while ww > 0:
                    k = min(ww, 16)
                    out.append("s_nop %d" % (k - 1)); ww -= k
                hist = [(p, d + w) for p, d in hist]
            out.append(t)
            hist = [(p, d + c.states) for p, d in hist if d + c.states < 24]
            hist.append((c, 0))
        self.nnop = nnop
        return "\n".join(("" if (l.endswith(":") or l.startswith(".")) else "    ") + l for l in out) + "\n"
```

```python
import sys, math, struct
sys.path.insert(0, "dev")
from asmdsl import Asm

NAME = "sequential_preLN__sliding_block__moe_arch_mod__prompt"
WS_Q, WS_K, WS_V, WS_O, WS_H = 0x000000, 0x200000, 0x400000, 0x600000, 0x800000
WS_ST = 0xA00000
WS_WR = 0xA08000
WS_ACT = 0xA10000
WS_SEL = 0xA18000
WS_BYTES = 268435456
KA = dict(x=0, wqkv=8, wo=16, wr=32, wg=40, wu=48, wd=56, out=64, dbg=72, ws=80)

def f2u(f): return struct.unpack("<I", struct.pack("<f", f))[0]
def hx(v): return "0x%08x" % (v & 0xffffffff)

def srd(a, d, lo, hi, nbytes, off=0):
    if off:
        a("s_add_u32 s%d, s%d, %s" % (d, lo, hx(off)))
        a("s_addc_u32 s%d, s%d, %s" % (d + 1, hi, "-1" if off < 0 else "0"))
    else:
        a("s_mov_b32 s%d, s%d" % (d, lo))
        a("s_mov_b32 s%d, s%d" % (d + 1, hi))
    a("s_mov_b32 s%d, %s" % (d + 2, hx(nbytes)))
    a("s_mov_b32 s%d, 0x00020000" % (d + 3))

def vr(b, n=4): return "v[%d:%d]" % (b, b + n - 1)

KERNELS = []
def kernel(name, a, grid, block, lds, nv, ns=102):
    body = a.finish()
    KERNELS.append(dict(name=name, body=body, grid=grid, block=block, lds=lds, nv=nv, ns=ns, nnop=a.nnop))

def k1():
    a = Asm()
    XF = 64
    ACC = 192
    WF = 16
    LDS_X = 98304
    a("s_cmp_ge_u32 s2, 256")
    a("s_cbranch_scc1 K1_END")
    a("s_load_dwordx4 s[4:7], s[0:1], 0")
    a("s_load_dwordx2 s[8:9], s[0:1], 80")
    a("s_and_b32 s20, s2, 7")
    a("s_lshr_b32 s21, s2, 3")
    a("s_lshr_b32 s22, s20, 1")
    a("s_lshl_b32 s22, s22, 2")
    a("s_lshr_b32 s23, s21, 3")
    a("s_add_u32 s22, s22, s23")
    a("s_and_b32 s23, s20, 1")
    a("s_lshl_b32 s23, s23, 3")
    a("s_and_b32 s24, s21, 7")
    a("s_add_u32 s23, s23, s24")
    a("v_lshrrev_b32 v1, 6, v0")
    a("v_readfirstlane_b32 s25, v1")
    a("v_and_b32 v2, 63, v0")
    a("v_lshrrev_b32 v3, 5, v2")
    a("v_and_b32 v4, 31, v2")
    a("s_lshl_b32 s26, s22, 7")
    a("s_lshl_b32 s27, s25, 5")
    a("s_add_u32 s26, s26, s27")
    a("v_xor_b32 v5, v4, v3")
    a("v_lshlrev_b32 v5, 4, v5")
    a("v_lshl_add_u32 v5, v3, 10, v5")
    a("s_lshl_b32 s27, s26, 10")
    a("v_add_u32 v5, s27, v5")
    for i in range(8):
        a("v_xor_b32 v%d, %d, v5" % (52 + i, (2 * i) << 4))
    a("s_lshl_b32 s27, s25, 6")
    a("s_lshl_b32 s28, s23, 6")
    for jj in range(3):
        a("v_add_u32 v6, s27, v2")
        if jj: a("v_add_u32 v6, %d, v6" % (256 * jj))
        a("v_mul_u32_u24 v7, 43691, v6")
        a("v_lshrrev_b32 v7, 19, v7")
        a("v_mul_u32_u24 v8, 12, v7")
        a("v_sub_u32 v8, v6, v8")
        a("v_lshrrev_b32 v9, 2, v8")
        a("v_and_b32 v8, 3, v8")
        a("v_lshlrev_b32 v8, 4, v8")
        a("v_lshl_add_u32 v8, v9, 10, v8")
        a("v_mul_u32_u24 v7, 3072, v7")
        a("v_add3_u32 v%d, v7, v8, s28" % (60 + jj))
    a("s_waitcnt lgkmcnt(0)")
    srd(a, 12, 4, 5, 2097152)
    srd(a, 16, 6, 7, 1572864)
    srd(a, 36, 8, 9, 0x600000)
    a("s_lshl_b32 s30, s25, 10")
    a("s_lshl_b32 s31, s25, 14")
    a("s_add_u32 s31, s31, %d" % LDS_X)
    def wdma(j):
        a("s_mov_b32 m0, s30" if j == 0 else "s_add_u32 m0, s30, %d" % (4096 * j))
        a("s_mov_b32 s32, %d" % ((j // 3) * 196608))
        a("buffer_load_dwordx4 v%d, s[16:19], s32 offen lds" % (60 + j % 3))
    for j in range(3): wdma(j)
    for i in range(16):
        a("s_add_u32 m0, s31, %d" % (1024 * i))
        a("s_mov_b32 s32, %d" % (2048 * i))
        a("buffer_load_dwordx4 v%d, s[12:15], s32 offen lds" % (52 + i % 8))
    for j in range(3, 24): wdma(j)
    for i in range(16):
        a("s_mov_b32 s32, %d" % (2048 * i + 512))
        a("buffer_load_dwordx4 %s, v%d, s[12:15], s32 offen" % (vr(XF + 64 + 4 * i), 52 + i % 8))
    a("v_and_b32 v5, 15, v4")
    a("v_xor_b32 v5, v5, v3")
    a("v_lshlrev_b32 v5, 4, v5")
    a("v_lshl_add_u32 v5, v4, 9, v5")
    a("v_add_u32 v5, s31, v5")
    a("v_lshlrev_b32 v6, 4, v2")
    a("v_add_u32 v6, s31, v6")
    a("v_and_b32 v7, 15, v2")
    a("v_lshrrev_b32 v8, 2, v7")
    a("v_lshl_add_u32 v8, v3, 3, v8")
    a("v_mul_u32_u24 v8, 192, v8")
    a("v_and_b32 v7, 3, v7")
    a("v_lshlrev_b32 v7, 3, v7")
    a("v_bfe_u32 v9, v2, 4, 1")
    a("v_lshl_add_u32 v7, v9, 5, v7")
    a("v_add_u32 v7, v7, v8")
    a("v_add_u32 v8, 49152, v7")
    for i in range(48): a("v_mov_b32 v%d, 0" % (ACC + i))
    for r in (10, 11, 12, 13, 14): a("v_mov_b32 v%d, 0" % r)
    a("v_mov_b32 v15, 0x3f803f80")
    for i in range(1, 8):
        a("v_xor_b32 v%d, %d, v5" % (240 + i, (2 * i) << 4))
    a("v_mov_b32 v240, v5")
    def xread(half):
        for s in range(16):
            a("ds_read_b128 %s, v%d offset:%d" % (vr(XF + 64 * half + 4 * s), 240 + s % 8, 256 * (s // 8)))
    def wread(ks):
        b = WF + 12 * (ks % 3)
        base = 7 if ks < 16 else 8
        o = (ks % 16) * 16 * 192
        for t in range(3):
            a("ds_read_b64_tr_b16 %s, v%d offset:%d" % (vr(b + 4 * t, 2), base, o + 64 * t))
            a("ds_read_b64_tr_b16 %s, v%d offset:%d" % (vr(b + 4 * t + 2, 2), base, o + 64 * t + 4 * 192))
    def stats(ks):
        for r in range(4):
            x = XF + 4 * ks + r
            a("v_dot2c_f32_bf16 v10, v%d, v15" % x)
            a("v_dot2c_f32_bf16 v11, v%d, v%d" % (x, x))
    def mf(ks):
        b = WF + 12 * (ks % 3); x = XF + 4 * ks
        a("v_mfma_f32_32x32x16_bf16 %s, %s, %s, %s" % (vr(ACC, 16), vr(b), vr(x), vr(ACC, 16)))
        a("v_mfma_f32_32x32x16_bf16 %s, %s, %s, %s" % (vr(ACC + 16, 16), vr(b + 4), vr(x), vr(ACC + 16, 16)))
        a("v_mfma_f32_32x32x16_bf16 %s, %s, %s, %s" % (vr(ACC + 32, 16), vr(x), vr(b + 8), vr(ACC + 32, 16)))
    def colsum(ks):
        b = WF + 12 * (ks % 3)
        a("s_cmp_lg_u32 s25, %d" % (ks % 4))
        a("s_cbranch_scc1 K1_CS%d" % ks)
        for t in range(3):
            for r in range(4):
                a("v_dot2c_f32_bf16 v%d, v%d, v15" % (12 + t, b + 4 * t + r))
        a.flush()
        a.label("K1_CS%d" % ks)
    a("s_waitcnt vmcnt(37)")
    xread(0)
    a("s_barrier")
    wread(0)
    a("s_waitcnt lgkmcnt(6)")
    for ks in range(16): stats(ks)
    for ks in range(32):
        nx = ks + 1
        if nx < 32:
            if nx % 4 == 0:
                st = nx // 4
                if st < 4:
                    a("s_waitcnt vmcnt(%d)" % ((7 - st) * 3 + 16))
                a("s_barrier")
            wread(nx)
            a("s_waitcnt lgkmcnt(6)")
        else:
            a("s_waitcnt lgkmcnt(0)")
        mf(ks)
        colsum(ks)
        if ks == 11:
            a("s_waitcnt vmcnt(0)")
            for i in range(16):
                a("ds_write_b128 v6, %s offset:%d" % (vr(XF + 64 + 4 * i), 1024 * i))
            a("s_waitcnt lgkmcnt(0)")
            xread(1)
            a("s_waitcnt lgkmcnt(0)")
            a("v_mov_b32 v9, 0")
            a("v_lshlrev_b32 v52, 2, v2")
            a("v_add_u32 v52, s31, v52")
            a("ds_write_b32 v52, v9")
            a("ds_write_b32 v52, v9 offset:256")
            a("s_waitcnt lgkmcnt(0)")
            for k2 in range(16, 32): stats(k2)
    a("v_lshlrev_b32 v52, 2, v4")
    a("v_add_u32 v52, %d, v52" % LDS_X)
    for t in range(3):
        a("ds_add_f32 v52, v%d offset:%d" % (12 + t, 128 * t))
    a("v_mov_b32 v53, v10")
    a("v_mov_b32 v54, v11")
    a("v_permlane32_swap_b32 v10, v53")
    a("v_permlane32_swap_b32 v11, v54")
    a("v_add_f32 v10, v10, v53")
    a("v_add_f32 v11, v11, v54")
    a("v_mul_f32 v10, %s, v10" % hx(f2u(1.0 / 512)))
    a("v_mul_f32 v11, %s, v11" % hx(f2u(1.0 / 512)))
    a("v_fma_f32 v11, -v10, v10, v11")
    a("v_max_f32 v11, 0, v11")
    a("v_add_f32 v11, %s, v11" % hx(f2u(1e-5)))
    a("v_rsq_f32 v11, v11")
    a("v_mul_f32 v12, v10, v11")
    a("v_sub_f32 v12, 0, v12")
    a("v_lshlrev_b32 v53, 2, v4")
    a("v_add_u32 v53, s31, v53")
    a("ds_write_b32 v53, v11 offset:1024")
    a("ds_write_b32 v53, v12 offset:1280")
    a("s_waitcnt lgkmcnt(0)")
    a("s_barrier")
    a("v_lshlrev_b32 v53, 4, v3")
    a("v_add_u32 v54, %d, v53" % LDS_X)
    a("v_add_u32 v53, s31, v53")
    CS = 64
    for t in range(2):
        for q in range(4):
            a("ds_read_b128 %s, v54 offset:%d" % (vr(CS + 16 * t + 4 * q), 128 * t + 32 * q))
    a("ds_read_b32 v13, v52 offset:256")
    for q in range(4):
        a("ds_read_b128 %s, v53 offset:%d" % (vr(CS + 32 + 4 * q), 1024 + 32 * q))
        a("ds_read_b128 %s, v53 offset:%d" % (vr(CS + 48 + 4 * q), 1280 + 32 * q))
    qs = 0.25 * math.log2(math.e)
    a("v_mul_f32 v14, %s, v11" % hx(f2u(qs)))
    a("v_mul_f32 v9, %s, v12" % hx(f2u(qs)))
    a("s_lshl_b32 s27, s23, 17")
    a("s_lshl_b32 s28, s26, 5")
    a("s_add_u32 s27, s27, s28")
    a("v_lshlrev_b32 v55, 4, v2")
    a("v_add_u32 v55, s27, v55")
    a("v_and_b32 v56, 15, v2")
    a("v_lshlrev_b32 v56, 4, v56")
    a("v_lshl_add_u32 v56, v3, 8, v56")
    a("v_bfe_u32 v57, v2, 4, 1")
    a("v_lshl_add_u32 v56, v57, 16, v56")
    a("v_add_u32 v56, s27, v56")
    a("s_mov_b32 s40, %d" % 65536)
    a("s_mov_b32 s41, %d" % WS_K)
    a("s_mov_b32 s42, %d" % (WS_K + 65536))
    a("s_mov_b32 s43, %d" % WS_V)
    a("s_waitcnt lgkmcnt(0)")
    PK = 128
    for t in range(2):
        sa, sb = (14, 9) if t == 0 else (11, 12)
        for i in range(16):
            r = ACC + 16 * t + i
            a("v_mul_f32 v%d, v%d, v%d" % (r, r, sa))
            a("v_fma_f32 v%d, v%d, v%d, v%d" % (r, CS + 16 * t + i, sb, r))
        for i in range(8):
            a("v_cvt_pk_bf16_f32 v%d, v%d, v%d" % (PK + 8 * t + i, ACC + 16 * t + 2 * i, ACC + 16 * t + 2 * i + 1))
        a("buffer_store_dwordx4 %s, v55, s[36:39], %s offen" % (vr(PK + 8 * t), "0" if t == 0 else "s41"))
        a("buffer_store_dwordx4 %s, v55, s[36:39], %s offen" % (vr(PK + 8 * t + 4), "s40" if t == 0 else "s42"))
    for i in range(16):
        r = ACC + 32 + i
        a("v_mul_f32 v%d, v%d, v13" % (CS + 48 + i, CS + 48 + i))
        a("v_fma_f32 v%d, v%d, v%d, v%d" % (r, r, CS + 32 + i, CS + 48 + i))
    for i in range(8):
        a("v_cvt_pk_bf16_f32 v%d, v%d, v%d" % (PK + 16 + i, ACC + 32 + 2 * i, ACC + 32 + 2 * i + 1))
    a("buffer_store_dwordx4 %s, v56, s[36:39], s43 offen" % vr(PK + 16))
    a("buffer_store_dwordx4 %s, v56, s[36:39], s43 offen offset:512" % vr(PK + 20))
    a.label("K1_END")
    a("s_endpgm")
    kernel("k1_kernel", a, 256, 256, 163840, 248)

def k2():
    a = Asm()
    QF = 8
    KF = 12
    VF = 48
    SA, SB, SC = 120, 136, 152
    NM = 168
    OA = 184
    PM = 200
    PB = 208
    PX = 224
    NEG = hx(f2u(-1e30))
    a("s_cmp_gt_u32 s2, 512")
    a("s_cbranch_scc1 K2_END")
    a("s_load_dwordx2 s[8:9], s[0:1], 80")
    a("s_load_dwordx2 s[4:5], s[0:1], 32")
    a("s_cmp_eq_u32 s2, 512")
    a("s_cbranch_scc1 K2_SIDE")
    a("s_and_b32 s20, s2, 7")
    a("s_lshr_b32 s21, s2, 3")
    a("s_and_b32 s22, s21, 3")
    a("s_lshl_b32 s20, s20, 2")
    a("s_add_u32 s22, s22, s20")
    a("s_lshr_b32 s23, s21, 2")
    a("v_lshrrev_b32 v1, 6, v0")
    a("v_readfirstlane_b32 s25, v1")
    a("v_and_b32 v2, 63, v0")
    a("s_lshl_b32 s23, s23, 2")
    a("s_add_u32 s24, s23, s25")
    a("s_lshl_b32 s26, s22, 16")
    a("s_lshl_b32 s27, s24, 10")
    a("s_add_u32 s26, s26, s27")
    a("v_lshlrev_b32 v3, 4, v2")
    a("v_add_u32 v3, s26, v3")
    a("v_and_b32 v4, 15, v2")
    a("v_lshlrev_b32 v4, 4, v4")
    a("v_lshrrev_b32 v5, 5, v2")
    a("v_lshl_add_u32 v4, v5, 8, v4")
    a("v_add_u32 v4, s26, v4")
    for i in range(72): a("v_mov_b32 v%d, 0x3f803f80" % (VF + i))
    a("s_waitcnt lgkmcnt(0)")
    srd(a, 12, 8, 9, 0x200000, WS_Q)
    srd(a, 16, 8, 9, 0x202000, WS_K - 8192)
    srd(a, 28, 8, 9, 0x202000, WS_V - 8192)
    srd(a, 32, 8, 9, 0x200000, WS_O)
    for i in range(1, 3): a("s_mov_b32 s%d, %d" % (35 + i, 4096 * i))
    a("buffer_load_dwordx4 %s, v3, s[12:15], 0 offen" % vr(QF))
    order = [8, 0, 7, 6, 5, 4, 3, 2, 1]
    so = lambda o: ("0" if o < 4096 else "s%d" % (35 + o // 4096), o % 4096)
    for j in order:
        s_, o_ = so(1024 * j)
        a("buffer_load_dwordx4 %s, v3, s[16:19], %s offen offset:%d" % (vr(KF + 4 * j), s_, o_))
    a("s_mov_b32 exec_lo, 0x0000ffff")
    a("s_mov_b32 exec_hi, 0x0000ffff")
    for j in order:
        for u in range(2):
            s_, o_ = so(1024 * j + 512 * u)
            a("buffer_load_dwordx4 %s, v4, s[28:31], %s offen offset:%d" % (vr(VF + 8 * j + 4 * u), s_, o_))
    a("s_mov_b64 exec, -1")
    for i in range(16):
        a0 = 8 * (i // 4) + i % 4
        a("s_mov_b32 s%d, %s" % (40 + 2 * i, hx(0xffffffff << a0)))
        a("s_mov_b32 s%d, %s" % (41 + 2 * i, hx(0xffffffff << (a0 + 4))))
    a("v_mov_b32 v5, 0xffff")
    a("v_mov_b32 v6, 0xffff0000")
    for p in range(8):
        a("v_cndmask_b32 v7, 0, v5, s[%d:%d]" % (40 + 4 * p, 41 + 4 * p))
        a("v_cndmask_b32 v%d, 0, v6, s[%d:%d]" % (PM + p, 42 + 4 * p, 43 + 4 * p))
        a("v_or_b32 v%d, v%d, v7" % (PM + p, PM + p))
    for i in range(16): a("v_mov_b32 v%d, 0" % (OA + i))
    def qk(dst, j, c):
        a("v_mfma_f32_32x32x16_bf16 %s, %s, %s, %s" % (vr(dst, 16), vr(KF + 4 * j), vr(QF), c))
    def merged(c, tag):
        qk(SA, 8, c)
        a("s_cmp_lt_u32 s24, 8")
        a("s_cbranch_scc1 K2_NEG%s" % tag)
        qk(SB, 0, c)
        a("s_branch K2_J%s" % tag)
        a.flush()
        a.label("K2_NEG%s" % tag)
        for i in range(16): a("v_mov_b32 v%d, %s" % (SB + i, NEG))
        a.flush()
        a.label("K2_J%s" % tag)
        qk(SC, 7, c)
        a("s_nop 7")
        a("s_nop 3")
        for i in range(16):
            a("v_cndmask_b32 v%d, v%d, v%d, s[%d:%d]" % (SA + i, SB + i, SA + i, 40 + 2 * i, 41 + 2 * i))
    a("s_waitcnt vmcnt(18)")
    merged("0", "A")
    bufs = [SA, SC, SB]
    def mx(S, first):
        if first:
            a("v_max3_f32 v5, v%d, v%d, v%d" % (S, S + 1, S + 2))
            a("v_max3_f32 v6, v%d, v%d, v%d" % (S + 3, S + 4, S + 5))
            for i in range(6, 16, 4):
                a("v_max3_f32 v5, v5, v%d, v%d" % (S + i, S + i + 1))
                if i + 2 < 16: a("v_max3_f32 v6, v6, v%d, v%d" % (S + i + 2, S + i + 3))
        else:
            for i in range(0, 16, 4):
                a("v_max3_f32 v5, v5, v%d, v%d" % (S + i, S + i + 1))
                a("v_max3_f32 v6, v6, v%d, v%d" % (S + i + 2, S + i + 3))
    seq = [7, 6, 5, 4, 3, 2, 1]
    mx(SA, True)
    cur = SC; other = SB
    for n, j in enumerate(seq):
        a("s_cmp_lt_u32 s24, %d" % (8 - j))
        a("s_cbranch_scc1 K2_P1END")
        if n + 1 < len(seq): qk(other, seq[n + 1], "0")
        mx(cur, False)
        cur, other = other, cur
    a.flush()
    a.label("K2_P1END")
    a("v_max_f32 v5, v5, v6")
    a("v_mov_b32 v6, v5")
    a("v_permlane32_swap_b32 v5, v6")
    a("v_max_f32 v5, v5, v6")
    a("v_sub_f32 v5, 0, v5")
    for i in range(16): a("v_mov_b32 v%d, v5" % (NM + i))
    merged(vr(NM, 16), "B")
    def expp(S, P):
        for i in range(0, 16, 2):
            a("v_exp_f32 v%d, v%d" % (S + i, S + i))
            a("v_exp_f32 v%d, v%d" % (S + i + 1, S + i + 1))
            if i >= 2: a("v_cvt_pk_bf16_f32 v%d, v%d, v%d" % (P + i // 2 - 1, S + i - 2, S + i - 1))
        a("v_cvt_pk_bf16_f32 v%d, v%d, v%d" % (P + 7, S + 14, S + 15))
    def pv(P, j):
        for u in range(2):
            a("v_mfma_f32_32x32x16_bf16 %s, %s, %s, %s" % (vr(OA, 16), vr(VF + 8 * j + 4 * u), vr(P + 4 * u), vr(OA, 16)))
    expp(SA, PB)
    for p in range(8):
        a("v_bfi_b32 v%d, v%d, 0, v%d" % (PX + p, PM + p, PB + p))
        a("v_and_b32 v%d, v%d, v%d" % (PB + p, PB + p, PM + p))
    a("s_waitcnt vmcnt(14)")
    pv(PB, 8)
    pv(PX, 0)
    cur = SC; other = SB
    pcur = PB + 8; pother = PB
    for n, j in enumerate(seq):
        a("s_cmp_lt_u32 s24, %d" % (8 - j))
        a("s_cbranch_scc1 K2_P2END")
        if n + 1 < len(seq): qk(other, seq[n + 1], vr(NM, 16))
        expp(cur, pcur)
        a("s_waitcnt vmcnt(%d)" % (12 - 2 * n))
        pv(pcur, j)
        cur, other = other, cur
        pcur, pother = pother, pcur
    a.label("K2_P2END")
    a("s_nop 7")
    a("s_nop 3")
    a("v_rcp_f32 v5, v%d" % (OA + 8))
    for i in range(8): a("v_mul_f32 v%d, v%d, v5" % (OA + i, OA + i))
    for i in range(4): a("v_cvt_pk_bf16_f32 v%d, v%d, v%d" % (PB + i, OA + 2 * i, OA + 2 * i + 1))
    a("buffer_store_dwordx4 %s, v3, s[32:35], 0 offen" % vr(PB))
    a("s_endpgm")
    a.flush()
    a.label("K2_SIDE")
    a("s_waitcnt lgkmcnt(0)")
    srd(a, 12, 4, 5, 1024)
    srd(a, 16, 8, 9, 0x10000, WS_ST)
    a("v_and_b32 v2, 63, v0")
    a("v_lshlrev_b32 v3, 4, v2")
    a("buffer_load_dwordx4 v[8:11], v3, s[12:15], 0 offen")
    for i in range(4): a("v_mov_b32 v%d, 0" % (12 + i))
    a("v_lshlrev_b32 v4, 4, v0")
    for i in range(6):
        a("buffer_store_dwordx4 v[12:15], v4, s[16:19], 0 offen offset:%d" % 0 if i == 0 else
          "buffer_store_dwordx4 v[12:15], v4, s[16:19], s%d offen" % (40 + i))
        a("s_mov_b32 s%d, %d" % (41 + i, 4096 * (i + 1)))
    a("s_waitcnt vmcnt(6)")
    for i in range(4):
        a("v_lshlrev_b32 v%d, 16, v%d" % (16 + 2 * i, 8 + i))
        a("v_and_b32 v%d, 0xffff0000, v%d" % (17 + 2 * i, 8 + i))
    a("v_add_f32 v5, v16, v17")
    for i in range(2, 8): a("v_add_f32 v5, v5, v%d" % (16 + i))
    for sw in (0x041F, 0x081F, 0x101F, 0x201F, 0x401F):
        a("ds_swizzle_b32 v6, v5 offset:%s" % hex(sw))
        a("s_waitcnt lgkmcnt(0)")
        a("v_add_f32 v5, v5, v6")
    a("v_mov_b32 v6, v5")
    a("v_permlane32_swap_b32 v5, v6")
    a("v_add_f32 v5, v5, v6")
    a("v_mul_f32 v5, %s, v5" % hx(f2u(1.0 / 512)))
    for i in range(8): a("v_sub_f32 v%d, v%d, v5" % (16 + i, 16 + i))
    a("v_lshlrev_b32 v3, 5, v2")
    a("s_mov_b32 s40, %d" % (WS_WR - WS_ST))
    a("buffer_store_dwordx4 v[16:19], v3, s[16:19], s40 offen")
    a("buffer_store_dwordx4 v[20:23], v3, s[16:19], s40 offen offset:16")
    a.label("K2_END")
    a("s_endpgm")
    kernel("k2_kernel", a, 513, 256, 0, 232)

def k3():
    a = Asm()
    OF = 16
    WFR = 80
    ACC = 144
    XR = 208
    WR = 216
    RS = 17408
    a("s_cmp_ge_u32 s2, 256")
    a("s_cbranch_scc1 K3_END")
    a("s_load_dwordx2 s[4:5], s[0:1], 0")
    a("s_load_dwordx2 s[6:7], s[0:1], 16")
    a("s_load_dwordx2 s[8:9], s[0:1], 80")
    a("s_and_b32 s20, s2, 7")
    a("s_lshr_b32 s21, s2, 3")
    a("s_lshl_b32 s20, s20, 2")
    a("s_lshr_b32 s22, s21, 3")
    a("s_add_u32 s22, s22, s20")
    a("s_and_b32 s23, s21, 7")
    a("v_lshrrev_b32 v1, 6, v0")
    a("v_readfirstlane_b32 s25, v1")
    a("v_and_b32 v2, 63, v0")
    a("v_lshrrev_b32 v3, 5, v2")
    a("v_and_b32 v4, 31, v2")
    a("s_lshl_b32 s26, s25, 19")
    a("s_lshl_b32 s27, s22, 11")
    a("s_add_u32 s26, s26, s27")
    a("v_lshlrev_b32 v5, 4, v2")
    a("v_add_u32 v5, s26, v5")
    a("v_lshrrev_b32 v6, 3, v2")
    a("v_and_b32 v7, 7, v2")
    a("v_bfe_u32 v8, v6, 1, 1")
    a("v_lshlrev_b32 v8, 2, v8")
    a("v_xor_b32 v7, v7, v8")
    a("v_lshlrev_b32 v7, 4, v7")
    a("v_lshl_add_u32 v6, v6, 10, v7")
    a("s_lshl_b32 s26, s25, 17")
    a("s_lshl_b32 s27, s23, 7")
    a("s_add_u32 s26, s26, s27")
    a("v_add_u32 v6, s26, v6")
    a("v_lshrrev_b32 v9, 2, v0")
    a("v_and_b32 v10, 3, v0")
    a("s_lshl_b32 s26, s22, 16")
    a("s_add_u32 s26, s26, s27")
    a("v_lshlrev_b32 v11, 5, v10")
    a("v_lshl_add_u32 v11, v9, 10, v11")
    a("v_add_u32 v11, s26, v11")
    a("v_lshlrev_b32 v12, 6, v10")
    a("s_lshl_b32 s27, s23, 8")
    a("v_add_u32 v12, s27, v12")
    a("s_mul_i32 s31, s25, %d" % RS)
    a("s_waitcnt lgkmcnt(0)")
    srd(a, 12, 4, 5, 2097152)
    srd(a, 16, 6, 7, 524288)
    srd(a, 36, 8, 9, 0x200000, WS_O)
    srd(a, 40, 8, 9, 0x200000, WS_H)
    srd(a, 44, 8, 9, 0x10000, WS_ST)
    for s in range(8):
        for half in range(2):
            i = 2 * s + half
            a("s_add_u32 m0, s31, %d" % (1024 * i))
            a("s_mov_b32 s32, %d" % (8192 * i))
            a("buffer_load_dwordx4 v6, s[16:19], s32 offen lds")
        a("s_mov_b32 s32, %d" % (65536 * s))
        for tu in range(2):
            a("buffer_load_dwordx4 %s, v5, s[36:39], s32 offen offset:%d" % (vr(OF + 8 * s + 4 * tu), 1024 * tu))
    a("buffer_load_dwordx4 %s, v11, s[12:15], 0 offen" % vr(XR))
    a("buffer_load_dwordx4 %s, v11, s[12:15], 0 offen offset:16" % vr(XR + 4))
    a("s_mov_b32 s33, %d" % (WS_WR - WS_ST))
    for q in range(4):
        a("buffer_load_dwordx4 %s, v12, s[44:47], s33 offen offset:%d" % (vr(WR + 4 * q), 16 * q))
    a("v_and_b32 v7, 15, v2")
    a("v_lshrrev_b32 v8, 2, v7")
    a("v_lshl_add_u32 v8, v3, 2, v8")
    a("v_lshlrev_b32 v8, 7, v8")
    a("v_and_b32 v13, 3, v7")
    a("v_lshlrev_b32 v13, 3, v13")
    a("v_bfe_u32 v14, v2, 4, 1")
    a("v_lshl_add_u32 v13, v14, 5, v13")
    a("v_bfe_u32 v14, v7, 3, 1")
    a("v_lshl_add_u32 v13, v14, 6, v13")
    a("v_add3_u32 v7, v8, v13, s31")
    a("v_xor_b32 v8, 64, v7")
    for i in range(64): a("v_mov_b32 v%d, 0" % (ACC + i))
    for s in range(8):
        a("s_waitcnt vmcnt(%d)" % (6 + 4 * (7 - s)))
        for cu in range(2):
            b = WFR + 8 * s + 4 * cu
            a("ds_read_b64_tr_b16 %s, v%d offset:%d" % (vr(b, 2), 7 + cu, 2048 * s))
            a("ds_read_b64_tr_b16 %s, v%d offset:%d" % (vr(b + 2, 2), 7 + cu, 2048 * s + 1024))
        if s > 0:
            a("s_waitcnt lgkmcnt(4)")
            for cu in range(2):
                for tu in range(2):
                    d = ACC + 32 * cu + 16 * tu
                    a("v_mfma_f32_32x32x16_bf16 %s, %s, %s, %s" % (vr(d, 16), vr(WFR + 8 * (s - 1) + 4 * cu), vr(OF + 8 * (s - 1) + 4 * tu), vr(d, 16)))
    a("s_waitcnt lgkmcnt(0)")
    for cu in range(2):
        for tu in range(2):
            d = ACC + 32 * cu + 16 * tu
            a("v_mfma_f32_32x32x16_bf16 %s, %s, %s, %s" % (vr(d, 16), vr(WFR + 56 + 4 * cu), vr(OF + 56 + 4 * tu), vr(d, 16)))
    a("v_mul_u32_u24 v13, 272, v4")
    a("v_lshl_add_u32 v13, v3, 4, v13")
    a("v_add_u32 v13, s31, v13")
    for cu in range(2):
        for tu in range(2):
            for q in range(4):
                a("ds_write_b128 v13, %s offset:%d" % (vr(ACC + 32 * cu + 16 * tu + 4 * q), tu * 32 * 272 + cu * 128 + q * 32))
    a("v_mul_u32_u24 v13, 272, v9")
    a("v_lshl_add_u32 v13, v10, 6, v13")
    a("s_waitcnt lgkmcnt(0)")
    a("s_barrier")
    for w in range(4):
        for q in range(4):
            a("ds_read_b128 %s, v13 offset:%d" % (vr(16 + 16 * w + 4 * q), w * RS + 16 * q))
    a("s_waitcnt vmcnt(0)")
    for i in range(8):
        a("v_lshlrev_b32 v%d, 16, v%d" % (80 + 2 * i, XR + i))
        a("v_and_b32 v%d, 0xffff0000, v%d" % (81 + 2 * i, XR + i))
    a("s_waitcnt lgkmcnt(0)")
    for i in range(16):
        a("v_add_f32 v%d, v%d, v%d" % (16 + i, 16 + i, 32 + i))
        a("v_add_f32 v%d, v%d, v%d" % (48 + i, 48 + i, 64 + i))
        a("v_add_f32 v%d, v%d, v%d" % (16 + i, 16 + i, 48 + i))
    for i in range(8):
        a("v_cvt_pk_bf16_f32 v%d, v%d, v%d" % (96 + i, 16 + 2 * i, 17 + 2 * i))
    for i in range(8):
        a("v_lshlrev_b32 v%d, 16, v%d" % (16 + 2 * i, 96 + i))
        a("v_and_b32 v%d, 0xffff0000, v%d" % (17 + 2 * i, 96 + i))
    for i in range(16):
        a("v_add_f32 v%d, v%d, v%d" % (16 + i, 16 + i, 80 + i))
    for i in range(8):
        a("v_cvt_pk_bf16_f32 v%d, v%d, v%d" % (96 + i, 16 + 2 * i, 17 + 2 * i))
    a("buffer_store_dwordx4 v[96:99], v11, s[40:43], 0 offen")
    a("buffer_store_dwordx4 v[100:103], v11, s[40:43], 0 offen offset:16")
    for i in range(8):
        a("v_lshlrev_b32 v%d, 16, v%d" % (16 + 2 * i, 96 + i))
        a("v_and_b32 v%d, 0xffff0000, v%d" % (17 + 2 * i, 96 + i))
    a("v_add_f32 v32, v16, v17")
    a("v_mul_f32 v33, v16, v16")
    a("v_mul_f32 v34, v16, v%d" % WR)
    a("v_fma_f32 v33, v17, v17, v33")
    a("v_fma_f32 v34, v17, v%d, v34" % (WR + 1))
    for i in range(2, 16):
        a("v_add_f32 v32, v32, v%d" % (16 + i))
        a("v_fma_f32 v33, v%d, v%d, v33" % (16 + i, 16 + i))
        a("v_fma_f32 v34, v%d, v%d, v34" % (16 + i, WR + i))
    for perm in ("[1,0,3,2]", "[2,3,0,1]"):
        for r in (32, 33, 34):
            a("v_add_f32_dpp v%d, v%d, v%d quad_perm:%s row_mask:0xf bank_mask:0xf" % (r + 4, r, r, perm))
        for r in (32, 33, 34):
            a("v_mov_b32 v%d, v%d" % (r, r + 4))
    a("v_cmp_eq_u32 vcc, 1, v10")
    a("v_cndmask_b32 v32, v32, v33, vcc")
    a("v_cmp_eq_u32 vcc, 2, v10")
    a("v_cndmask_b32 v32, v32, v34, vcc")
    a("s_lshl_b32 s26, s22, 8")
    a("v_lshlrev_b32 v35, 2, v9")
    a("v_lshl_add_u32 v35, v10, 13, v35")
    a("v_add_u32 v35, s26, v35")
    a("s_mov_b32 exec_lo, 0x77777777")
    a("s_mov_b32 exec_hi, 0x77777777")
    a("buffer_atomic_add_f32 v32, v35, s[44:47], 0 offen")
    a.label("K3_END")
    a("s_endpgm")
    kernel("k3_kernel", a, 256, 256, 4 * RS, 232)

def wave_reduce(a, b, n):
    hlf = n // 2
    for i in range(hlf):
        a("v_permlane32_swap_b32 v%d, v%d" % (b + i, b + hlf + i))
    for i in range(hlf):
        a("v_add_f32 v%d, v%d, v%d" % (b + i, b + i, b + hlf + i))
    q = n // 4
    for i in range(q):
        a("v_permlane16_swap_b32 v%d, v%d" % (b + i, b + q + i))
    for i in range(q):
        a("v_add_f32 v%d, v%d, v%d" % (b + i, b + i, b + q + i))
    for ror in (8, 4, 2, 1):
        for i in range(q):
            a("v_add_f32_dpp v%d, v%d, v%d row_ror:%d row_mask:0xf bank_mask:0xf" % (b + q + i, b + i, b + i, ror))
        for i in range(q):
            a("v_mov_b32 v%d, v%d" % (b + i, b + q + i))

def ln_stats(a, s1, s2, mean, rstd):
    a("v_mul_f32 v%d, %s, v%d" % (mean, hx(f2u(1.0 / 512)), s1))
    a("v_mul_f32 v%d, %s, v%d" % (rstd, hx(f2u(1.0 / 512)), s2))
    a("v_fma_f32 v%d, -v%d, v%d, v%d" % (rstd, mean, mean, rstd))
    a("v_max_f32 v%d, 0, v%d" % (rstd, rstd))
    a("v_add_f32 v%d, %s, v%d" % (rstd, hx(f2u(1e-5)), rstd))
    a("v_rsq_f32 v%d, v%d" % (rstd, rstd))

def k4():
    a = Asm()
    a("s_cmp_ge_u32 s2, 300")
    a("s_cbranch_scc1 K4_END")
    a("s_load_dwordx4 s[4:7], s[0:1], 40")
    a("s_load_dwordx2 s[8:9], s[0:1], 80")
    a("s_load_dwordx2 s[10:11], s[0:1], 64")
    a("s_waitcnt lgkmcnt(0)")
    srd(a, 12, 4, 5, 1409024)
    srd(a, 16, 6, 7, 1409024)
    srd(a, 20, 8, 9, 0x200000, WS_H)
    srd(a, 24, 8, 9, 0x20000, WS_ST)
    srd(a, 28, 10, 11, 2097152)
    a("s_cmp_ge_u32 s2, 172")
    a("s_cbranch_scc1 K4_LN")
    a("s_mov_b32 s40, 8192")
    a("s_mov_b32 s41, 16384")
    a("v_lshlrev_b32 v1, 5, v0")
    for k in range(3):
        so = "0" if k == 0 else "s%d" % (39 + k)
        a("buffer_load_dwordx4 %s, v1, s[24:27], %s offen" % (vr(8 + 8 * k), so))
        a("buffer_load_dwordx4 %s, v1, s[24:27], %s offen offset:16" % (vr(12 + 8 * k), so))
    a("v_mul_u32_u24 v2, 5504, v0")
    a("s_lshl_b32 s33, s2, 4")
    a("v_add_u32 v2, s33, v2")
    a("buffer_load_dwordx4 v[32:35], v2, s[12:15], 0 offen")
    a("buffer_load_dwordx4 v[36:39], v2, s[12:15], 0 offen offset:2752")
    a("buffer_load_dwordx4 v[40:43], v2, s[16:19], 0 offen")
    a("buffer_load_dwordx4 v[44:47], v2, s[16:19], 0 offen offset:2752")
    a("v_lshrrev_b32 v3, 6, v0")
    a("v_readfirstlane_b32 s34, v3")
    a("v_lshlrev_b32 v4, 3, v0")
    a("v_sub_u32 v4, 2047, v4")
    a("s_movk_i32 s35, 0xf800")
    a("s_waitcnt vmcnt(4)")
    for i in range(8):
        ln_stats(a, 8 + i, 16 + i, 48, 49)
        a("v_mul_f32 v48, v%d, v49" % (24 + i))
        a("v_ashrrev_i32 v49, 31, v48")
        a("v_or_b32 v49, 0x80000000, v49")
        a("v_xor_b32 v48, v48, v49")
        a("v_subrev_u32 v49, %d, v4" % i)
        a("v_and_or_b32 v%d, v48, s35, v49" % (50 + i))
    a("v_max_u32 v5, v50, v51")
    a("v_min_u32 v6, v50, v51")
    for i in range(2, 8):
        a("v_med3_u32 v6, v5, v6, v%d" % (50 + i))
        a("v_max_u32 v5, v5, v%d" % (50 + i))
    def merge():
        a("v_min_u32 v59, v5, v7")
        a("v_max_u32 v5, v5, v7")
        a("v_max3_u32 v6, v6, v58, v59")
    for ror in (1, 2, 4, 8):
        a("v_mov_b32_dpp v7, v5 row_ror:%d row_mask:0xf bank_mask:0xf" % ror)
        a("v_mov_b32_dpp v58, v6 row_ror:%d row_mask:0xf bank_mask:0xf" % ror)
        merge()
    for sw in ("v_permlane16_swap_b32", "v_permlane32_swap_b32"):
        a("v_mov_b32 v7, v5")
        a("v_mov_b32 v58, v6")
        a("%s v5, v7" % sw)
        a("%s v6, v58" % sw)
        merge()
    a("v_lshlrev_b32 v7, 3, v3")
    a("ds_write_b64 v7, v[5:6]" if False else "ds_write2_b32 v7, v5, v6 offset0:0 offset1:1")
    a("s_waitcnt lgkmcnt(0)")
    a("s_barrier")
    a("v_mov_b32 v7, 0")
    a("ds_read_b128 v[60:63], v7")
    a("ds_read_b128 v[64:67], v7 offset:16")
    a("s_mov_b32 s36, 0x05040100")
    a("s_mov_b32 s37, 0x07060302")
    a("s_waitcnt vmcnt(0)")
    for m in range(2):
        for d in range(4):
            lo, hi = 32 + 8 * m + d, 36 + 8 * m + d
            a("v_perm_b32 v%d, v%d, v%d, s36" % (72 + 8 * m + 2 * d, hi, lo))
            a("v_perm_b32 v%d, v%d, v%d, s37" % (73 + 8 * m + 2 * d, hi, lo))
    a("s_waitcnt lgkmcnt(0)")
    a("v_mov_b32 v5, v60")
    a("v_mov_b32 v6, v61")
    for w in range(1, 4):
        a("v_mov_b32 v7, v%d" % (60 + 2 * w))
        a("v_mov_b32 v58, v%d" % (61 + 2 * w))
        merge()
    a("v_and_b32 v5, 0x7ff, v5")
    a("v_and_b32 v6, 0x7ff, v6")
    a("v_sub_u32 v5, 2047, v5")
    a("v_sub_u32 v6, 2047, v6")
    a("v_lshlrev_b32 v7, 2, v0")
    a("v_lshl_add_u32 v8, v5, 10, v7")
    a("v_lshl_add_u32 v9, v6, 10, v7")
    a("buffer_load_dword v10, v8, s[20:23], 0 offen")
    a("buffer_load_dword v11, v9, s[20:23], 0 offen")
    a("v_lshlrev_b32 v8, 2, v5")
    a("v_lshlrev_b32 v9, 2, v6")
    for k in range(3):
        so = "0" if k == 0 else "s%d" % (39 + k)
        a("buffer_load_dword v%d, v8, s[24:27], %s offen" % (12 + k, so))
        a("buffer_load_dword v%d, v9, s[24:27], %s offen" % (15 + k, so))
    a("s_waitcnt vmcnt(0)")
    ln_stats(a, 12, 13, 18, 19)
    ln_stats(a, 15, 16, 20, 21)
    for t in range(2):
        mean, rstd, src = 18 + 2 * t, 19 + 2 * t, 10 + t
        a("v_lshlrev_b32 v22, 16, v%d" % src)
        a("v_and_b32 v23, 0xffff0000, v%d" % src)
        a("v_sub_f32 v22, v22, v%d" % mean)
        a("v_sub_f32 v23, v23, v%d" % mean)
        a("v_mul_f32 v22, v22, v%d" % rstd)
        a("v_mul_f32 v23, v23, v%d" % rstd)
        a("v_cvt_pk_bf16_f32 v%d, v22, v23" % (24 + t))
    R = 96
    for t in range(2):
        for j in range(16):
            a("v_dot2_f32_bf16 v%d, v%d, v%d, 0" % (R + 16 * t + j, 72 + j, 24 + t))
    wave_reduce(a, R, 32)
    a("v_and_b32 v26, 63, v0")
    a("v_lshrrev_b32 v26, 4, v26")
    a("v_lshlrev_b32 v26, 5, v26")
    a("v_lshl_add_u32 v26, v3, 7, v26")
    a("ds_write_b128 v26, v[%d:%d] offset:64" % (R, R + 3))
    a("ds_write_b128 v26, v[%d:%d] offset:80" % (R + 4, R + 7))
    a("s_waitcnt lgkmcnt(0)")
    a("s_barrier")
    a("s_cmp_lg_u32 s34, 0")
    a("s_cbranch_scc1 K4_END")
    a("v_and_b32 v27, 7, v0")
    a("v_bfe_u32 v28, v0, 3, 1")
    a("v_lshlrev_b32 v29, 2, v27")
    a("v_lshl_add_u32 v29, v28, 6, v29")
    for w in range(4):
        a("ds_read_b32 v%d, v29 offset:%d" % (32 + w, 64 + 128 * w))
        a("ds_read_b32 v%d, v29 offset:%d" % (36 + w, 96 + 128 * w))
    a("s_waitcnt lgkmcnt(0)")
    a("v_add_f32 v32, v32, v33")
    a("v_add_f32 v34, v34, v35")
    a("v_add_f32 v36, v36, v37")
    a("v_add_f32 v38, v38, v39")
    a("v_add_f32 v32, v32, v34")
    a("v_add_f32 v36, v36, v38")
    a("v_mul_f32 v33, %s, v32" % hx(f2u(-math.log2(math.e))))
    a("v_exp_f32 v33, v33")
    a("v_add_f32 v33, 1.0, v33")
    a("v_rcp_f32 v33, v33")
    a("v_mul_f32 v32, v32, v33")
    a("v_mul_f32 v32, v32, v36")
    a("v_cvt_pk_bf16_f32 v32, v32, v32")
    a("v_lshlrev_b32 v29, 1, v27")
    a("v_lshl_add_u32 v29, v28, 12, v29")
    a("v_add_u32 v29, s33, v29")
    a("s_mov_b32 s42, %d" % (WS_ACT - WS_ST))
    a("s_mov_b32 exec_lo, 0xffff")
    a("s_mov_b32 exec_hi, 0")
    a("buffer_store_short v32, v29, s[24:27], s42 offen")
    a("s_cmp_lg_u32 s2, 0")
    a("s_cbranch_scc1 K4_END")
    for t in range(2):
        a("v_mul_f32 v40, v%d, v%d" % (14 + 3 * t, 19 + 2 * t))
        a("v_mul_f32 v40, %s, v40" % hx(f2u(-math.log2(math.e))))
        a("v_exp_f32 v40, v40")
        a("v_add_f32 v40, 1.0, v40")
        a("v_rcp_f32 v%d, v40" % (46 + t))
    a("v_mov_b32 v44, v5")
    a("v_mov_b32 v45, v6")
    a("v_mov_b32 v48, v18")
    a("v_mov_b32 v49, v20")
    a("v_mov_b32 v50, v19")
    a("v_mov_b32 v51, v21")
    a("v_mov_b32 v41, 0")
    a("s_mov_b32 s42, %d" % (WS_SEL - WS_ST))
    a("s_mov_b32 exec_lo, 1")
    a("buffer_store_dwordx4 v[44:47], v41, s[24:27], s42 offen")
    a("buffer_store_dwordx4 v[48:51], v41, s[24:27], s42 offen offset:16")
    a("s_endpgm")
    a.flush()
    a.label("K4_LN")
    a("s_sub_u32 s33, s2, 172")
    a("s_lshl_b32 s34, s33, 14")
    a("v_lshlrev_b32 v1, 4, v0")
    a("v_add_u32 v1, s34, v1")
    for q in range(4):
        a("buffer_load_dwordx4 %s, v1, s[20:23], 0 offen offset:%d" % (vr(8 + 4 * q), 0) if q == 0 else
          "buffer_load_dwordx4 %s, v1, s[20:23], s%d offen" % (vr(8 + 4 * q), 40 + q))
        a("s_mov_b32 s%d, %d" % (41 + q, 4096 * (q + 1)))
    a("v_lshrrev_b32 v2, 6, v0")
    a("s_lshl_b32 s35, s33, 6")
    a("v_lshlrev_b32 v2, 2, v2")
    a("v_add_u32 v2, s35, v2")
    a("s_mov_b32 s36, 8192")
    for q in range(4):
        a("buffer_load_dword v%d, v2, s[24:27], 0 offen offset:%d" % (24 + q, 16 * q))
        a("buffer_load_dword v%d, v2, s[24:27], s36 offen offset:%d" % (28 + q, 16 * q))
    a("s_waitcnt vmcnt(0)")
    for q in range(4):
        ln_stats(a, 24 + q, 28 + q, 32, 33)
        a("v_mul_f32 v32, v32, v33")
        a("v_add_f32 v33, 1.0, v33")
        for d in range(4):
            r = 8 + 4 * q + d
            a("v_lshlrev_b32 v34, 16, v%d" % r)
            a("v_and_b32 v35, 0xffff0000, v%d" % r)
            a("v_fma_f32 v34, v34, v33, -v32")
            a("v_fma_f32 v35, v35, v33, -v32")
            a("v_cvt_pk_bf16_f32 v%d, v34, v35" % r)
        a("buffer_store_dwordx4 %s, v1, s[28:31], %s offen" % (vr(8 + 4 * q), "0" if q == 0 else "s%d" % (40 + q)))
    a.label("K4_END")
    a("s_endpgm")
    kernel("k4_kernel", a, 300, 256, 1024, 128)

def k5():
    a = Asm()
    a("s_cmp_ge_u32 s2, 64")
    a("s_cbranch_scc1 K5_END")
    a("s_load_dwordx4 s[4:7], s[0:1], 56")
    a("s_load_dwordx2 s[8:9], s[0:1], 80")
    a("s_waitcnt lgkmcnt(0)")
    srd(a, 12, 4, 5, 1409024)
    srd(a, 16, 6, 7, 2097152)
    srd(a, 20, 8, 9, 0x200000, WS_H)
    srd(a, 24, 8, 9, 2752, WS_ACT)
    srd(a, 28, 8, 9, 2752, WS_ACT + 4096)
    srd(a, 36, 8, 9, 32, WS_SEL)
    a("s_lshl_b32 s33, s2, 4")
    a("v_lshlrev_b32 v1, 11, v0")
    a("v_add_u32 v1, s33, v1")
    a("v_lshlrev_b32 v2, 2, v0")
    a("v_mov_b32 v3, 0")
    a("buffer_load_dwordx4 v[4:7], v3, s[36:39], 0 offen")
    a("buffer_load_dwordx4 v[8:11], v3, s[36:39], 0 offen offset:16")
    for p in range(3):
        a("buffer_load_dword v%d, v2, s[24:27], 0 offen offset:%d" % (12 + p, 1024 * p))
        a("buffer_load_dword v%d, v2, s[28:31], 0 offen offset:%d" % (15 + p, 1024 * p))
    for p in range(3):
        a("s_mov_b32 s40, %d" % (524288 * p))
        a("buffer_load_dwordx4 %s, v1, s[12:15], s40 offen" % vr(32 + 8 * p))
        a("buffer_load_dwordx4 %s, v1, s[12:15], s40 offen offset:1024" % vr(36 + 8 * p))
    a("v_lshrrev_b32 v18, 6, v0")
    a("v_readfirstlane_b32 s34, v18")
    a("s_mov_b32 s36, 0x05040100" if False else "s_mov_b32 s42, 0x05040100")
    a("s_mov_b32 s43, 0x07060302")
    a("v_and_b32 v27, 7, v0")
    a("v_bfe_u32 v28, v0, 3, 1")
    a("v_cmp_eq_u32 vcc, 1, v28")
    a("s_waitcnt vmcnt(12)")
    a("v_cndmask_b32 v19, v4, v5, vcc")
    a("v_cndmask_b32 v20, v6, v7, vcc")
    a("v_cndmask_b32 v21, v8, v9, vcc")
    a("v_cndmask_b32 v22, v10, v11, vcc")
    a("v_and_b32 v19, 0x7ff, v19")
    a("v_lshlrev_b32 v23, 1, v27")
    a("v_lshl_add_u32 v23, v19, 10, v23")
    a("v_add_u32 v23, s33, v23")
    a("buffer_load_ushort v24, v23, s[20:23], 0 offen")
    R = 96
    for i in range(16): a("v_mov_b32 v%d, 0" % (R + i))
    for p in range(3):
        a("s_waitcnt vmcnt(%d)" % (5 - 2 * p))
        for d in range(4):
            lo, hi = 32 + 8 * p + d, 36 + 8 * p + d
            a("v_perm_b32 v%d, v%d, v%d, s42" % (64 + 2 * d, hi, lo))
            a("v_perm_b32 v%d, v%d, v%d, s43" % (65 + 2 * d, hi, lo))
        for t in range(2):
            for c in range(8):
                a("v_dot2c_f32_bf16 v%d, v%d, v%d" % (R + 8 * t + c, 64 + c, 12 + 3 * t + p))
    wave_reduce(a, R, 16)
    a("v_and_b32 v26, 63, v0")
    a("v_lshrrev_b32 v26, 4, v26")
    a("v_lshlrev_b32 v26, 4, v26")
    a("v_lshl_add_u32 v26, v18, 6, v26")
    a("ds_write_b128 v26, v[%d:%d]" % (R, R + 3))
    a("s_waitcnt lgkmcnt(0)")
    a("s_barrier")
    a("s_cmp_lg_u32 s34, 0")
    a("s_cbranch_scc1 K5_END")
    a("v_and_b32 v29, 15, v0")
    a("v_lshlrev_b32 v29, 2, v29")
    for w in range(4):
        a("ds_read_b32 v%d, v29 offset:%d" % (32 + w, 64 * w))
    a("s_waitcnt vmcnt(0) lgkmcnt(0)")
    a("v_add_f32 v32, v32, v33")
    a("v_add_f32 v34, v34, v35")
    a("v_add_f32 v32, v32, v34")
    a("v_lshlrev_b32 v24, 16, v24")
    a("v_sub_f32 v25, v24, v21")
    a("v_mul_f32 v25, v25, v22")
    a("v_fma_f32 v25, v32, v20, v25")
    a("v_add_f32 v25, v25, v24")
    a("v_cvt_pk_bf16_f32 v25, v25, v25")
    a("s_mov_b32 exec_lo, 0xffff")
    a("s_mov_b32 exec_hi, 0")
    a("buffer_store_short v25, v23, s[16:19], 0 offen")
    a.label("K5_END")
    a("s_endpgm")
    kernel("k5_kernel", a, 64, 256, 1024, 128)

def emit(path):
    ref = open("cdna_kernels/%s.s.ref" % NAME).read().split("\n")
    hdr = [l for l in ref if l.startswith(";") and "@launch" not in l and "Override" not in l and "grid=ceil" not in l]
    out = hdr[:]
    for k in KERNELS:
        out.append("; @launch kernel=%s grid=(%d,1,1) block=(%d,1,1) lds=%d" % (k["name"], k["grid"], k["block"], k["lds"]))
    out.append('.amdgcn_target "amdgcn-amd-amdhsa--gfx950"')
    out.append(".text")
    for k in KERNELS:
        out += [".globl %s" % k["name"], ".p2align 8", ".type %s,@function" % k["name"], "%s:" % k["name"], k["body"]]
    out.append('.section .rodata,"a"')
    for k in KERNELS:
        nv = (k["nv"] + 3) // 4 * 4
        out += [".p2align 6", ".amdhsa_kernel %s" % k["name"],
                "  .amdhsa_next_free_vgpr %d" % nv, "  .amdhsa_next_free_sgpr %d" % k["ns"],
                "  .amdhsa_accum_offset %d" % nv, "  .amdhsa_group_segment_fixed_size 0",
                "  .amdhsa_kernarg_size 88", "  .amdhsa_user_sgpr_count 2",
                "  .amdhsa_user_sgpr_kernarg_segment_ptr 1", "  .amdhsa_system_sgpr_workgroup_id_x 1",
                ".end_amdhsa_kernel"]
    open(path, "w").write("\n".join(out) + "\n")
    for k in KERNELS: print(k["name"], "lines", k["body"].count("\n"), "nops", k["nnop"])

if __name__ == "__main__":
    k1(); k2(); k3(); k4(); k5()
    emit(sys.argv[1] if len(sys.argv) > 1 else "cdna_kernels/%s.s" % NAME)
```

```python
import sys, math, struct
sys.path.insert(0, "dev")
from asmdsl import Asm

NAME = "sequential_preLN__sliding_block__moe_arch_mod__prompt"
WS_Q, WS_K, WS_V, WS_O, WS_H = 0x000000, 0x200000, 0x400000, 0x600000, 0x800000
WS_ST = 0xA00000
WS_WR = 0xA08000
WS_ACT = 0xA10000
WS_SEL = 0xA18000
WS_BYTES = 268435456
KA = dict(x=0, wqkv=8, wo=16, wr=32, wg=40, wu=48, wd=56, out=64, dbg=72, ws=80)

def f2u(f): return struct.unpack("<I", struct.pack("<f", f))[0]
def hx(v): return "0x%08x" % (v & 0xffffffff)

def srd(a, d, lo, hi, nbytes, off=0):
    if off:
        a("s_add_u32 s%d, s%d, %s" % (d, lo, hx(off)))
        a("s_addc_u32 s%d, s%d, %s" % (d + 1, hi, "-1" if off < 0 else "0"))
    else:
        a("s_mov_b32 s%d, s%d" % (d, lo))
        a("s_mov_b32 s%d, s%d" % (d + 1, hi))
    a("s_mov_b32 s%d, %s" % (d + 2, hx(nbytes)))
    a("s_mov_b32 s%d, 0x00020000" % (d + 3))

def vr(b, n=4): return "v[%d:%d]" % (b, b + n - 1)

KERNELS = []
PFS = 64
STM = ""
def kernel(name, a, grid, block, lds, nv, ns=102, denorm=False):
    body = a.finish()
    KERNELS.append(dict(name=name, body=body, grid=grid, block=block, lds=lds, nv=nv, ns=ns, nnop=a.nnop, denorm=denorm))

class VM:
    def __init__(self, a): self.a = a; self.issued = []
    def ld(self, tag, text):
        self.a(text); self.issued.append(tag)
    def n(self, *tags):
        last = max(i for i, t in enumerate(self.issued) if t in tags)
        return len(self.issued) - 1 - last
    def wait(self, *tags):
        self.a("s_waitcnt vmcnt(%d)" % self.n(*tags))

def code_prefetch(a, tag, seg_sgpr, vtmp, vlane, s0):
    a("s_getpc_b64 s[%d:%d]" % (s0, s0 + 1))
    a.label("%s_PC" % tag)
    a("s_sub_u32 s%d, s%d, %s_PC-k1_kernel" % (s0, s0, tag))
    a("s_subb_u32 s%d, s%d, 0" % (s0 + 1, s0 + 1))
    a("s_mov_b32 s%d, CODE_END-k1_kernel" % (s0 + 2))
    a("s_mov_b32 s%d, 0x00020000" % (s0 + 3))
    a("s_lshl_b32 s%d, s%d, 12" % (seg_sgpr, seg_sgpr))
    a("v_lshlrev_b32 v%d, 6, v%d" % (vtmp, vlane))
    a("buffer_load_dword v%d, v%d, s[%d:%d], s%d offen" % (vtmp, vtmp, s0, s0 + 3, seg_sgpr))

def k1():
    a = Asm()
    LX = 49152
    LS = 81920
    ACC = 80
    FA = 16
    a("s_cmp_ge_u32 s2, 256")
    a("s_cbranch_scc1 K1_END")
    a("s_load_dwordx4 s[4:7], s[0:1], 0")
    a("s_load_dwordx2 s[8:9], s[0:1], 80")
    a("v_lshrrev_b32 v1, 6, v0")
    a("v_and_b32 v2, 63, v0")
    a("v_readfirstlane_b32 s33, v1")
    a("s_and_b32 s20, s2, 7")
    a("s_lshr_b32 s21, s2, 3")
    a("s_lshr_b32 s22, s20, 1")
    a("s_lshl_b32 s22, s22, 3")
    a("s_lshr_b32 s29, s21, 2")
    a("s_add_u32 s22, s22, s29")
    a("s_and_b32 s23, s20, 1")
    a("s_lshl_b32 s23, s23, 2")
    a("s_and_b32 s24, s21, 3")
    a("s_add_u32 s23, s23, s24")
    a("s_lshl_b32 s24, s24, 1")
    a("s_add_u32 s29, s29, s24")
    a("s_and_b32 s25, s33, 3")
    a("s_cmp_lt_u32 s33, 4")
    a("s_cbranch_scc1 K1_COMPUTE")
    def wtr_addr(dst, s_sp, s_hh):
        a("v_lshrrev_b32 v3, 5, v2")
        a("v_and_b32 v4, 31, v2")
        a("v_bfe_u32 v8, v2, 2, 2")
        a("v_lshl_add_u32 v8, v3, 3, v8")
        a("v_and_b32 v7, 3, v2")
        a("v_lshlrev_b32 v7, 3, v7")
        a("v_bfe_u32 v9, v2, 4, 1")
        a("v_lshl_add_u32 v7, v9, 5, v7")
        a("v_bfe_u32 v5, v2, 3, 1")
        a("v_lshl_add_u32 v7, v5, 6, v7")
        a("v_lshl_add_u32 v7, v8, 7, v7")
        a("s_lshl_b32 s27, s%d, 6" % s_hh)
        a("s_lshl_b32 s28, s%d, 11" % s_sp)
        a("s_or_b32 s27, s27, s28")
        a("v_xor_b32 v%d, s27, v7" % dst)
    a("s_setprio 3")
    a("v_lshrrev_b32 v13, 3, v2")
    a("v_and_b32 v14, 7, v2")
    a("v_lshrrev_b32 v12, 4, v2")
    a("v_xor_b32 v11, v14, v12")
    a("v_lshlrev_b32 v11, 4, v11")
    a("v_lshl_add_u32 v10, v13, 10, v11")
    a("s_lshl_b32 s27, s22, 16")
    a("s_lshl_b32 s28, s25, 14")
    a("s_add_u32 s27, s27, s28")
    a("v_add_u32 v10, s27, v10")
    a("v_xor_b32 v11, 64, v10")
    a("v_add_u32 v11, 8192, v11")
    a("v_and_b32 v12, 1, v12")
    a("v_lshlrev_b32 v12, 2, v12")
    a("v_xor_b32 v12, v12, v14")
    a("v_lshlrev_b32 v12, 4, v12")
    a("v_mul_u32_u24 v13, 3072, v13")
    a("s_mul_i32 s27, s25, 24576")
    a("s_lshl_b32 s28, s23, 7")
    a("s_add_u32 s27, s27, s28")
    a("v_add3_u32 v12, v12, v13, s27")
    a("s_lshl_b32 s30, s25, 10")
    a("s_lshl_b32 s31, s25, 11")
    a("s_add_u32 s31, s31, %d" % LX)
    a("s_waitcnt lgkmcnt(0)")
    a("; @STAMP 1")
    srd(a, 12, 4, 5, 2097152)
    srd(a, 16, 6, 7, 1572864)
    def group(h):
        it = h // 2
        if h % 2 == 0:
            a("s_add_u32 s34, s29, %d" % it)
            a("s_and_b32 s34, s34, 7")
            a("s_lshl_b32 s35, s34, 7")
            a("s_mul_i32 s34, s34, 196608")
            for u in range(2):
                a("s_add_u32 m0, s31, %d" % (8192 * (it % 4) + 1024 * u))
                a("buffer_load_dwordx4 v%d, s[12:15], s35 offen lds" % (10 + u))
        else:
            a("s_add_u32 s34, s34, 98304")
        for t in range(3):
            a("s_add_u32 m0, s30, %d" % (12288 * (h % 4) + 3072 * t))
            a("buffer_load_dwordx4 v12, s[16:19], s34 offen offset:%d lds" % (1024 * t))
    gs = lambda h: (5 if h % 2 == 0 else 3) if h < 16 else 0
    for h in range(3): group(h)
    a("; @STAMP 2")
    a("s_and_b32 s36, s25, 1")
    a("s_lshr_b32 s37, s25, 1")
    a("s_mov_b32 s38, %d" % LS)
    wtr_addr(28, 36, 37)
    for r in (24, 25, 26): a("v_mov_b32 v%d, 0" % r)
    a("v_mov_b32 v15, 0x3f803f80")
    a("v_lshlrev_b32 v27, 2, v4")
    a("v_add_u32 v27, %d, v27" % LS)
    a("s_mul_i32 s28, s25, 384")
    a("v_add_u32 v30, s28, v27")
    def cdots(h):
        b = 32 + 12 * (h % 2)
        for r in range(4):
            for t in range(3):
                a("v_dot2c_f32_bf16 v%d, v%d, v15" % (24 + t, b + 4 * t + r))
    for h in range(16):
        a("s_waitcnt vmcnt(%d) lgkmcnt(0)" % (gs(h + 1) + gs(h + 2)))
        if h == 0: a("; @STAMP 3")
        a("s_barrier")
        b = 32 + 12 * (h % 2)
        for t in range(3):
            a("ds_read_b64_tr_b16 %s, v28 offset:%d" % (vr(b + 4 * t, 2), 12288 * (h % 4) + 4096 * t))
            a("ds_read_b64_tr_b16 %s, v28 offset:%d" % (vr(b + 4 * t + 2, 2), 12288 * (h % 4) + 4096 * t + 512))
        if h + 3 < 16: group(h + 3)
        if h > 0: cdots(h - 1)
    a("s_waitcnt lgkmcnt(0)")
    cdots(15)
    for t in range(3): a("v_mov_b32 v%d, v%d" % (20 + t, 24 + t))
    for t in range(3): a("v_permlane32_swap_b32 v%d, v%d" % (24 + t, 20 + t))
    for t in range(3):
        a("v_add_f32 v%d, v%d, v%d" % (24 + t, 24 + t, 20 + t))
        a("ds_write_b32 v30, v%d offset:%d" % (24 + t, 1024 + 128 * t))
    a("s_waitcnt lgkmcnt(0)")
    a("s_barrier")
    a("s_lshl_b32 s28, s25, 6")
    a("v_add_u32 v20, s28, v2")
    a("v_cmp_le_u32 vcc, 96, v20")
    a("v_cndmask_b32 v21, 0, 1, vcc")
    a("v_mul_u32_u24 v21, 384, v21")
    a("v_lshlrev_b32 v20, 2, v20")
    a("v_add3_u32 v21, v21, v20, s%d" % 38)
    a("ds_read_b32 v22, v21 offset:1024")
    a("ds_read_b32 v23, v21 offset:1408")
    a("v_add_u32 v20, %d, v20" % LS)
    a("s_waitcnt lgkmcnt(0)")
    a("v_add_f32 v22, v22, v23")
    a("ds_write_b32 v20, v22")
    a("s_waitcnt lgkmcnt(0)")
    a("s_barrier")
    a("s_endpgm")
    a.flush()
    a.label("K1_COMPUTE")
    a("s_lshl_b32 s27, s21, 2")
    a("s_add_u32 s27, s27, s25")
    a("s_and_b32 s27, s27, 7")
    code_prefetch(a, "K1", 27, 1, 2, 44)
    a("s_and_b32 s30, s25, 1")
    a("s_lshr_b32 s31, s25, 1")
    wtr_addr(7, 30, 30)
    a("v_xor_b32 v8, 2048, v7")
    a("v_bfe_u32 v5, v4, 1, 3")
    a("v_xor_b32 v5, v5, v3")
    a("v_lshlrev_b32 v5, 4, v5")
    a("v_lshl_add_u32 v5, v4, 7, v5")
    a("s_lshl_b32 s27, s31, 12")
    a("s_add_u32 s27, s27, %d" % LX)
    a("v_add_u32 v5, s27, v5")
    a("s_lshl_b32 s27, s30, 5")
    a("v_xor_b32 v136, s27, v5")
    a("v_xor_b32 v137, 32, v136")
    a("v_xor_b32 v138, 64, v136")
    a("v_xor_b32 v139, 64, v137")
    for i in range(48): a("v_mov_b32 v%d, 0" % (ACC + i))
    for i in range(4): a("v_mov_b32 v%d, 0" % (128 + i))
    a("v_mov_b32 v132, 0x3f803f80")
    a("s_lshl_b32 s26, s22, 6")
    a("s_lshl_b32 s27, s31, 5")
    a("s_add_u32 s26, s26, s27")
    a("s_lshl_b32 s23, s23, 1")
    a("s_add_u32 s23, s23, s30")
    a("s_lshl_b32 s27, s23, 17")
    a("s_lshl_b32 s28, s26, 5")
    a("s_add_u32 s27, s27, s28")
    a("v_lshlrev_b32 v10, 4, v2")
    a("v_add_u32 v10, s27, v10")
    a("v_and_b32 v11, 15, v2")
    a("v_lshlrev_b32 v11, 4, v11")
    a("v_lshl_add_u32 v11, v3, 8, v11")
    a("v_lshl_add_u32 v11, v9, 16, v11")
    a("v_add_u32 v11, s27, v11")
    a("s_mov_b32 s40, %d" % 65536)
    a("s_mov_b32 s41, %d" % WS_K)
    a("s_mov_b32 s42, %d" % (WS_K + 65536))
    a("s_mov_b32 s43, %d" % WS_V)
    a("s_mul_i32 s27, s30, 384")
    a("s_add_u32 s27, s27, %d" % LS)
    a("v_lshlrev_b32 v13, 4, v3")
    a("v_add_u32 v12, s27, v13")
    a("v_lshlrev_b32 v15, 2, v4")
    a("v_add_u32 v14, s27, v15")
    a("s_lshl_b32 s28, s25, 8")
    a("s_add_u32 s28, s28, %d" % LS)
    a("v_add_u32 v13, s28, v13")
    a("v_add_u32 v15, s28, v15")
    a("v_xor_b32 v6, 256, v15")
    a("s_waitcnt lgkmcnt(0)")
    srd(a, 36, 8, 9, 0x600000)
    side_k1(a)
    def reads(h):
        p = FA + 32 * (h % 2)
        r = []
        for sg in range(2):
            r.append("ds_read_b128 %s, v%d offset:%d" % (vr(p + 4 * sg), 136 + 2 * (h % 2) + sg, 8192 * ((h // 2) % 4)))
        for sg in range(2):
            o = 12288 * (h % 4)
            for t in range(3):
                b = p + 8 + 12 * sg + 4 * t
                r.append("ds_read_b64_tr_b16 %s, v%d offset:%d" % (vr(b, 2), 7 + sg, o + 4096 * t))
                r.append("ds_read_b64_tr_b16 %s, v%d offset:%d" % (vr(b + 2, 2), 7 + sg, o + 4096 * t + 512))
        return r
    def mfs(h):
        p = FA + 32 * (h % 2)
        r = []
        for sp in range(2):
            x = p + 4 * sp; b = p + 8 + 12 * sp
            r.append("v_mfma_f32_32x32x16_bf16 %s, %s, %s, %s" % (vr(ACC, 16), vr(b), vr(x), vr(ACC, 16)))
            r.append("v_mfma_f32_32x32x16_bf16 %s, %s, %s, %s" % (vr(ACC + 16, 16), vr(b + 4), vr(x), vr(ACC + 16, 16)))
            r.append("v_mfma_f32_32x32x16_bf16 %s, %s, %s, %s" % (vr(ACC + 32, 16), vr(x), vr(b + 8), vr(ACC + 32, 16)))
        return r
    def sdots(h):
        b = FA + 32 * (h % 2)
        for r in range(4):
            a("v_dot2c_f32_bf16 v%d, v%d, v132" % (128 + r % 2, b + r))
            a("v_dot2c_f32_bf16 v%d, v%d, v%d" % (130 + r % 2, b + r, b + r))
    for h in range(16):
        a("s_waitcnt lgkmcnt(0)")
        a("s_barrier")
        if h == 0: a("; @STAMP 1")
        if h == 8: a("; @STAMP 2")
        R = reads(h)
        M = mfs(h - 1) if h > 0 else []
        if not M:
            for r in R: a(r)
        else:
            k = 0
            for i, m in enumerate(M):
                a(m)
                n = 3 if i < 4 else 1
                for r in R[k:k + n]: a(r)
                k += n
            sdots(h - 1)
    a("s_waitcnt lgkmcnt(13)")
    sdots(15)
    a("v_add_f32 v128, v128, v129")
    a("v_add_f32 v130, v130, v131")
    a("v_mov_b32 v129, v128")
    a("v_mov_b32 v131, v130")
    a("v_permlane32_swap_b32 v128, v129")
    a("v_permlane32_swap_b32 v130, v131")
    a("v_add_f32 v128, v128, v129")
    a("v_add_f32 v130, v130, v131")
    a("ds_write_b32 v15, v128 offset:2560")
    a("ds_write_b32 v15, v130 offset:2688")
    a("s_waitcnt lgkmcnt(0)")
    M = mfs(15)
    for m in M[:2]: a(m)
    a("s_barrier")
    a("ds_read_b32 v129, v6 offset:2560")
    a("ds_read_b32 v131, v6 offset:2688")
    for m in M[2:4]: a(m)
    a("s_waitcnt lgkmcnt(0)")
    a("v_add_f32 v128, v128, v129")
    a("v_add_f32 v130, v130, v131")
    ln_stats(a, 128, 130, 129, 133)
    a(M[4])
    a("v_mul_f32 v134, v129, v133")
    a("v_sub_f32 v134, 0, v134")
    a("ds_write_b32 v15, v133 offset:3584")
    a("ds_write_b32 v15, v134 offset:3712")
    a(M[5])
    qs = 0.25 * math.log2(math.e)
    a("v_mul_f32 v8, %s, v133" % hx(f2u(qs)))
    a("v_mul_f32 v9, %s, v134" % hx(f2u(qs)))
    a("s_waitcnt lgkmcnt(0)")
    a("; @STAMP 3")
    a("s_barrier")
    a("; @STAMP 4")
    CS = 16
    for t in range(2):
        for q in range(4):
            a("ds_read_b128 %s, v12 offset:%d" % (vr(CS + 16 * t + 4 * q), 128 * t + 32 * q))
    a("ds_read_b32 v5, v14 offset:256")
    for q in range(4):
        a("ds_read_b128 %s, v13 offset:%d" % (vr(CS + 32 + 4 * q), 3584 + 32 * q))
        a("ds_read_b128 %s, v13 offset:%d" % (vr(CS + 48 + 4 * q), 3712 + 32 * q))
    for t in range(2):
        sa = 8 if t == 0 else 133
        for i in range(16):
            r = ACC + 16 * t + i
            a("v_mul_f32 v%d, v%d, v%d" % (r, r, sa))
    a("s_waitcnt lgkmcnt(9)")
    for t in range(2):
        sb = 9 if t == 0 else 134
        for i in range(16):
            r = ACC + 16 * t + i
            a("v_fmac_f32 v%d, v%d, v%d" % (r, CS + 16 * t + i, sb))
        for i in range(8):
            a("v_cvt_pk_bf16_f32 v%d, v%d, v%d" % (CS + 16 * t + i, ACC + 16 * t + 2 * i, ACC + 16 * t + 2 * i + 1))
        a("buffer_store_dwordx4 %s, v10, s[36:39], %s offen%s" % (vr(CS + 16 * t), "0" if t == 0 else "s41", STM))
        a("buffer_store_dwordx4 %s, v10, s[36:39], %s offen%s" % (vr(CS + 16 * t + 4), "s40" if t == 0 else "s42", STM))
    a("s_waitcnt lgkmcnt(0)")
    for i in range(16):
        r = ACC + 32 + i
        a("v_mul_f32 v%d, v%d, v%d" % (r, r, CS + 32 + i))
        a("v_fmac_f32 v%d, v%d, v5" % (r, CS + 48 + i))
    for i in range(8):
        a("v_cvt_pk_bf16_f32 v%d, v%d, v%d" % (CS + 32 + i, ACC + 32 + 2 * i, ACC + 32 + 2 * i + 1))
    a("buffer_store_dwordx4 %s, v11, s[36:39], s43 offen%s" % (vr(CS + 32), STM))
    a("buffer_store_dwordx4 %s, v11, s[36:39], s43 offen offset:512%s" % (vr(CS + 36), STM))
    a.label("K1_END")
    a("s_endpgm")
    kernel("k1_kernel", a, 256, 512, LS + 4608, 140)

def side_k1(a):
    a("s_cmp_gt_u32 s25, 2")
    a("s_cbranch_scc1 K1_NOSIDE")
    srd(a, 48, 8, 9, ST_BYTES, WS_ST)
    a("s_mul_i32 s27, s2, 3072")
    a("s_lshl_b32 s28, s25, 10")
    a("s_add_u32 s27, s27, s28")
    a("v_lshlrev_b32 v20, 4, v2")
    a("v_add_u32 v20, s27, v20")
    for i in range(4): a("v_mov_b32 v%d, -1" % (16 + i))
    a("buffer_store_dwordx4 v[16:19], v20, s[48:51], 0 offen sc1")
    a.flush()
    a.label("K1_NOSIDE")

def k2():
    a = Asm()
    vm = VM(a)
    QF = 8
    KF = 16
    VF = 56
    SBUF = [136, 152, 168]
    NM = 184
    OA = 200
    PM = 216
    NEG = hx(f2u(-1e30))
    a("s_cmp_ge_u32 s2, 256")
    a("s_cbranch_scc1 K2_END")
    a("s_load_dwordx2 s[8:9], s[0:1], 80")
    a("s_load_dwordx2 s[4:5], s[0:1], 16")
    a("s_load_dwordx4 s[72:75], s[0:1], 40")
    a("s_load_dwordx2 s[76:77], s[0:1], 56")
    a("v_lshrrev_b32 v1, 6, v0")
    a("v_and_b32 v2, 63, v0")
    a("v_readfirstlane_b32 s25, v1")
    a("s_and_b32 s20, s2, 7")
    a("s_lshr_b32 s21, s2, 3")
    a("s_and_b32 s22, s21, 15")
    a("s_and_b32 s23, s20, 1")
    a("s_lshl_b32 s23, s23, 4")
    a("s_add_u32 s22, s22, s23")
    a("s_and_b32 s23, s20, 6")
    a("s_lshr_b32 s21, s21, 4")
    a("s_add_u32 s23, s23, s21")
    a("s_lshl_b32 s23, s23, 3")
    a("s_lshl_b32 s24, s25, 1")
    a("s_add_u32 s24, s24, s23")
    a("s_lshl_b32 s26, s22, 16")
    a("s_lshl_b32 s27, s24, 10")
    a("s_add_u32 s26, s26, s27")
    a("v_lshlrev_b32 v3, 4, v2")
    a("v_add_u32 v3, s26, v3")
    a("s_mov_b32 s36, 4096")
    a("s_mov_b32 s37, 8192")
    a("s_waitcnt lgkmcnt(0)")
    srd(a, 16, 8, 9, 0x202000, WS_K - 8192)
    srd(a, 12, 8, 9, 0x200000, WS_Q)
    so = lambda o: ("0" if o < 4096 else "s%d" % (35 + o // 4096), o % 4096)
    korder = [8, 0, 7, 6, 5, 4, 3, 2, 1]
    def kload(j):
        s_, o_ = so(1024 * j)
        vm.ld("K%d" % j, "buffer_load_dwordx4 %s, v3, s[16:19], %s offen offset:%d" % (vr(KF + 4 * j), s_, o_))
    vm.ld("Q0", "buffer_load_dwordx4 %s, v3, s[12:15], 0 offen" % vr(QF))
    for j in korder: kload(j)
    srd(a, 28, 8, 9, 0x202000, WS_V - 8192)
    srd(a, 32, 8, 9, 0x200000, WS_O)
    a("v_and_b32 v4, 15, v2")
    a("v_lshlrev_b32 v4, 4, v4")
    a("v_lshrrev_b32 v5, 5, v2")
    a("v_lshl_add_u32 v4, v5, 8, v4")
    a("v_add_u32 v4, s26, v4")
    for i in range(80): a("v_mov_b32 v%d, 0x3f803f80" % (VF + i))
    def vloads(js):
        a("s_mov_b32 exec_lo, 0x0000ffff")
        a("s_mov_b32 exec_hi, 0x0000ffff")
        for j in js:
            for u in range(2):
                s_, o_ = so(1024 * j + 512 * u)
                vm.ld("V%d" % j, "buffer_load_dwordx4 %s, v4, s[28:31], %s offen offset:%d" % (vr(VF + 8 * j + 4 * u), s_, o_))
        a("s_mov_b64 exec, -1")
    for i in range(16):
        a0 = 8 * (i // 4) + i % 4
        a("s_mov_b32 s%d, %s" % (40 + 2 * i, hx(0xffffffff << a0)))
        a("s_mov_b32 s%d, %s" % (41 + 2 * i, hx(0xffffffff << (a0 + 4))))
    a("v_mov_b32 v5, 0xffff")
    a("v_mov_b32 v6, 0xffff0000")
    for p in range(8):
        a("v_cndmask_b32 v7, 0, v5, s[%d:%d]" % (40 + 4 * p, 41 + 4 * p))
        a("v_cndmask_b32 v%d, 0, v6, s[%d:%d]" % (PM + p, 42 + 4 * p, 43 + 4 * p))
        a("v_or_b32 v%d, v%d, v7" % (PM + p, PM + p))
    vloads([8, 0, 7])
    stubs = []
    def unit(U):
        SA, SB, SC = SBUF
        Q = QF + 4 * U
        tg = "AB"[U]
        def qks(dst, j, c):
            return "v_mfma_f32_32x32x16_bf16 %s, %s, %s, %s" % (vr(dst, 16), vr(KF + 4 * (j + U)), vr(Q), c)
        def qk(dst, j, c): a(qks(dst, j, c))
        def merged(c, tag, waits):
            if waits: vm.wait("K%d" % (8 + U), "Q%d" % U)
            qk(SA, 8, c)
            a("s_cmp_lt_u32 s24, 8")
            a("s_cbranch_scc1 K2_NEG%s" % tag)
            if waits: vm.wait("K%d" % U)
            qk(SB, 0, c)
            a("s_branch K2_J%s" % tag)
            a.flush()
            a.label("K2_NEG%s" % tag)
            for i in range(16): a("v_mov_b32 v%d, %s" % (SB + i, NEG))
            a.flush()
            a.label("K2_J%s" % tag)
            if waits: vm.wait("K%d" % (7 + U))
            qk(SC, 7, c)
            if U == 0 and waits:
                vloads([6, 5, 4, 3, 2, 1])
                vm.ld("Q1", "buffer_load_dwordx4 %s, v3, s[12:15], 0 offen offset:1024" % vr(QF + 4))
                kload(9)
                vloads([9])
            else:
                a("s_nop 7")
                a("s_nop 3")
            for i in range(16):
                a("v_cndmask_b32 v%d, v%d, v%d, s[%d:%d]" % (SA + i, SB + i, SA + i, 40 + 2 * i, 41 + 2 * i))
        def mx(S, first):
            if first:
                a("v_max3_f32 v5, v%d, v%d, v%d" % (S, S + 1, S + 2))
                a("v_max3_f32 v6, v%d, v%d, v%d" % (S + 3, S + 4, S + 5))
                for i in range(6, 16, 4):
                    a("v_max3_f32 v5, v5, v%d, v%d" % (S + i, S + i + 1))
                    if i + 2 < 16: a("v_max3_f32 v6, v6, v%d, v%d" % (S + i + 2, S + i + 3))
            else:
                for i in range(0, 16, 4):
                    a("v_max3_f32 v5, v5, v%d, v%d" % (S + i, S + i + 1))
                    a("v_max3_f32 v6, v6, v%d, v%d" % (S + i + 2, S + i + 3))
        seq = [7, 6, 5, 4, 3, 2, 1]
        exits = lambda j: (j + U) % 2 == 1 and (j + U) <= 7
        if U == 0: a("; @STAMP 1")
        merged("0", tg + "1", True)
        if U == 0: a("; @STAMP 2")
        mx(SA, True)
        cur, other = SC, SB
        for n, j in enumerate(seq):
            if exits(j):
                a("s_cmp_lt_u32 s24, %d" % (8 - (j + U)))
                a("s_cbranch_scc1 K2_P1END%s" % tg)
            if n + 1 < len(seq):
                if U == 0: vm.wait("K%d" % seq[n + 1])
                qk(other, seq[n + 1], "0")
            mx(cur, False)
            cur, other = other, cur
        a.flush()
        a.label("K2_P1END%s" % tg)
        a("v_max_f32 v5, v5, v6")
        a("v_mov_b32 v6, v5")
        a("v_permlane32_swap_b32 v5, v6")
        a("v_max_f32 v5, v5, v6")
        a("v_sub_f32 v5, 0, v5")
        for i in range(16): a("v_mov_b32 v%d, v5" % (NM + i))
        if U == 0:
            a("; @STAMP 3")
            srd(a, 20, 4, 5, 524288)
            a("s_lshr_b32 s27, s2, 3")
            a("s_lshl_b32 s27, s27, 14")
            a("s_mul_i32 s26, s25, %d" % (64 * PFS))
            a("s_add_u32 s27, s27, s26")
            a("v_mul_u32_u24 v228, %d, v2" % PFS)
            vm.ld("PF", "buffer_load_dword v228, v228, s[20:23], s27 offen")
        merged(vr(NM, 16), tg + "2", False)
        def expp(S, inter):
            for g in range(8):
                i = 2 * g
                a("v_exp_f32 v%d, v%d" % (S + i, S + i))
                a("v_exp_f32 v%d, v%d" % (S + i + 1, S + i + 1))
                for l in inter.get(g, []): a(l)
                if i >= 2: a("v_cvt_pk_bf16_f32 v%d, v%d, v%d" % (S + g - 1, S + i - 2, S + i - 1))
            a("v_cvt_pk_bf16_f32 v%d, v%d, v%d" % (S + 7, S + 14, S + 15))
        def pvs(P, j, first=False):
            r = []
            for u in range(2):
                c = "0" if (first and u == 0) else vr(OA, 16)
                r.append("v_mfma_f32_32x32x16_bf16 %s, %s, %s, %s" % (vr(OA, 16), vr(VF + 8 * (j + U) + 4 * u), vr(P + 4 * u), c))
            return r
        vw = lambda *js: "s_waitcnt vmcnt(%d)" % vm.n(*["V%d" % (j + U) for j in js])
        expp(SA, {})
        for p in range(8):
            a("v_bfi_b32 v%d, v%d, 0, v%d" % (SA + 8 + p, PM + p, SA + p))
            a("v_and_b32 v%d, v%d, v%d" % (SA + p, SA + p, PM + p))
        pend = [vw(8, 0)] + pvs(SA, 8, True) + pvs(SA + 8, 0)
        ring = [SC, SB, SA]
        for n, j in enumerate(seq):
            if exits(j):
                a("s_cmp_lt_u32 s24, %d" % (8 - (j + U)))
                a("s_cbranch_scc1 K2_X%s%d" % (tg, j))
                stubs.append(("K2_X%s%d" % (tg, j), list(pend), "K2_P2END%s" % tg))
            cur = ring[n % 3]; nxt = ring[(n + 1) % 3]
            q = [qks(nxt, seq[n + 1], vr(NM, 16))] if n + 1 < len(seq) else []
            if len(pend) == 5:
                inter = {0: q, 1: pend[0:2], 3: [pend[2]], 5: [pend[3]], 7: [pend[4]]}
            else:
                inter = {0: pend[0:2], 2: [pend[2]], 4: q}
            expp(cur, inter)
            pend = [vw(j)] + pvs(cur, j)
        for l in pend: a(l)
        a.label("K2_P2END%s" % tg)
        a("s_nop 7")
        a("s_nop 3")
        a("v_rcp_f32 v5, v%d" % (OA + 8))
        for i in range(8): a("v_mul_f32 v%d, v%d, v5" % (OA + i, OA + i))
        for i in range(4): a("v_cvt_pk_bf16_f32 v%d, v%d, v%d" % (224 + i, OA + 2 * i, OA + 2 * i + 1))
        vm.ld("ST%d" % U, "buffer_store_dwordx4 v[224:227], v3, s[32:35], 0 offen offset:%d%s" % (1024 * U, STM))
        if U == 0:
            a("; @STAMP 4")
            a("s_cmp_eq_u32 s25, 0")
            a("s_cselect_b32 s20, s72, s74")
            a("s_cselect_b32 s21, s73, s75")
            a("s_cmp_lt_u32 s25, 2")
            a("s_cselect_b32 s20, s20, s76")
            a("s_cselect_b32 s21, s21, s77")
            a("s_mov_b32 s22, 1409024")
            a("s_mov_b32 s23, 0x00020000")
            a("s_lshr_b32 s26, s2, 3")
            a("s_and_b32 s27, s2, 7")
            a("s_lshl_b32 s38, s26, 6")
            a("v_add_u32 v229, s38, v2")
            a("v_lshrrev_b32 v230, 2, v229")
            a("v_mul_u32_u24 v230, 2752, v230")
            a("v_and_b32 v231, 3, v229")
            a("v_lshl_add_u32 v230, v231, 7, v230")
            a("s_mul_i32 s38, s27, 352")
            a("v_add_u32 v230, s38, v230")
            a("v_lshlrev_b32 v229, 10, v229")
            a("s_lshl_b32 s38, s27, 7")
            a("s_and_b32 s39, s25, 1")
            a("s_lshl_b32 s39, s39, 6")
            a("s_add_u32 s38, s38, s39")
            a("v_add_u32 v229, s38, v229")
            a("s_cmp_lt_u32 s25, 2")
            a("s_cselect_b64 vcc, -1, 0")
            a("v_cndmask_b32 v229, v229, v230, vcc")
            vm.ld("PF2", "buffer_load_dword v229, v229, s[20:23], 0 offen")
    unit(0)
    unit(1)
    a("s_endpgm")
    for lab, body, tgt in stubs:
        a.flush()
        a.label(lab)
        a("s_nop 1")
        for l in body: a(l)
        a("s_branch %s" % tgt)
    a.label("K2_END")
    a("s_endpgm")
    kernel("k2_kernel", a, 256, 256, 0, 232)

def wave_reduce(a, b, n):
    hlf = n // 2
    for i in range(hlf):
        a("v_permlane32_swap_b32 v%d, v%d" % (b + i, b + hlf + i))
    for i in range(hlf):
        a("v_add_f32 v%d, v%d, v%d" % (b + i, b + i, b + hlf + i))
    q = n // 4
    for i in range(q):
        a("v_permlane16_swap_b32 v%d, v%d" % (b + i, b + q + i))
    for i in range(q):
        a("v_add_f32 v%d, v%d, v%d" % (b + i, b + i, b + q + i))
    for ror in (8, 4, 2, 1):
        for i in range(q):
            a("v_add_f32_dpp v%d, v%d, v%d row_ror:%d row_mask:0xf bank_mask:0xf" % (b + i, b + i, b + i, ror))

def ln_stats(a, s1, s2, mean, rstd):
    a("v_mul_f32 v%d, %s, v%d" % (mean, hx(f2u(1.0 / 512)), s1))
    a("v_mul_f32 v%d, %s, v%d" % (rstd, hx(f2u(1.0 / 512)), s2))
    a("v_fma_f32 v%d, -v%d, v%d, v%d" % (rstd, mean, mean, rstd))
    a("v_max_f32 v%d, 0, v%d" % (rstd, rstd))
    a("v_add_f32 v%d, %s, v%d" % (rstd, hx(f2u(1e-5)), rstd))
    a("v_rsq_f32 v%d, v%d" % (rstd, rstd))

ST_PST = 0
ST_CAND = 0x40000
ST_GRN = 0x50000
ST_PSF = 0x51000
ST_ACT = 0x91000
ST_BYTES = ST_ACT + 172 * 128
FASTN = 12
SPIN = 400000
PRESLEEP1 = 0
PRESLEEP2 = 0
PRESLEEP4 = 0
LOOPSLEEP = 0
FMIN = "0xff7fffff"

def top2_merge(a, m1, m2, o1, o2, t):
    a("v_min_f32 v%d, v%d, v%d" % (t, m1, o1))
    a("v_max_f32 v%d, v%d, v%d" % (m1, m1, o1))
    a("v_max3_f32 v%d, v%d, v%d, v%d" % (m2, m2, o2, t))

def top2_wave(a, rors):
    for ror in rors:
        a("v_mov_b32_dpp v7, v5 row_ror:%d row_mask:0xf bank_mask:0xf" % ror)
        a("v_mov_b32_dpp v8, v6 row_ror:%d row_mask:0xf bank_mask:0xf" % ror)
        top2_merge(a, 5, 6, 7, 8, 9)
    for sw in ("v_permlane16_swap_b32", "v_permlane32_swap_b32"):
        a("v_mov_b32 v7, v5")
        a("v_mov_b32 v8, v6")
        a("%s v5, v7" % sw)
        a("%s v6, v8" % sw)
        top2_merge(a, 5, 6, 7, 8, 9)

def poll(a, tag, loads, regs_per_load, tmp, cnt=35, bound=None, ok=None):
    a("s_mov_b32 s%d, %d" % (cnt, bound or SPIN))
    a.flush()
    a.label("%s" % tag)
    if LOOPSLEEP: a("s_sleep %d" % LOOPSLEEP)
    for t, _ in loads: a(t)
    a("s_sub_u32 s%d, s%d, 1" % (cnt, cnt))
    first = True
    for n, (_, regs) in enumerate(loads):
        a("s_waitcnt vmcnt(%d)" % (len(loads) - 1 - n))
        regs = list(regs)
        while regs:
            if first:
                take = regs[:3]; regs = regs[3:]
                if len(take) == 3: a("v_max3_u32 v%d, v%d, v%d, v%d" % (tmp, *take))
                elif len(take) == 2: a("v_max_u32 v%d, v%d, v%d" % (tmp, *take))
                else: a("v_mov_b32 v%d, v%d" % (tmp, take[0]))
                first = False
            else:
                take = regs[:2]; regs = regs[2:]
                if len(take) == 2: a("v_max3_u32 v%d, v%d, v%d, v%d" % (tmp, tmp, *take))
                else: a("v_max_u32 v%d, v%d, v%d" % (tmp, tmp, take[0]))
    a("v_cmp_eq_u32 vcc, -1, v%d" % tmp)
    if ok:
        a("s_nop 4")
        a("s_cbranch_vccz %s" % ok)
        a("s_cmp_lg_u32 s%d, 0" % cnt)
        a("s_cbranch_scc1 %s" % tag)
        return
    a("s_cmp_eq_u32 s%d, 0" % cnt)
    a("s_cbranch_scc1 %sX" % tag)
    a("s_nop 3")
    a("s_cbranch_vccnz %s" % tag)
    a.label("%sX" % tag)

def k3():
    a = Asm()
    vm = VM(a)
    OF = 16
    WFR = 48
    ACC = 64
    XR, WR = 128, 136
    RS = 17408
    LK = 4 * RS
    LR = LK + 1536
    LW = LR + 2048
    pk = lambda d, x, y: a("v_pk_add_f32 v[%d:%d], v[%d:%d], v[%d:%d]" % (d, d + 1, x, x + 1, y, y + 1))
    a("s_cmp_ge_u32 s2, 256")
    a("s_cbranch_scc1 K3_END")
    a("s_load_dwordx2 s[8:9], s[0:1], 80")
    a("v_lshrrev_b32 v1, 6, v0")
    a("v_and_b32 v2, 63, v0")
    a("v_readfirstlane_b32 s33, v1")
    a("s_and_b32 s20, s2, 7")
    a("s_lshr_b32 s21, s2, 3")
    a("s_cmp_ge_u32 s33, 4")
    a("s_cbranch_scc1 K3_F")
    a("s_load_dwordx2 s[6:7], s[0:1], 16")
    a("s_load_dwordx2 s[4:5], s[0:1], 0")
    a("s_load_dwordx2 s[10:11], s[0:1], 32")
    a("s_load_dwordx2 s[52:53], s[0:1], 64")
    a("s_lshl_b32 s22, s20, 2")
    a("s_lshr_b32 s23, s21, 3")
    a("s_add_u32 s22, s22, s23")
    a("s_and_b32 s23, s21, 7")
    a("s_mov_b32 s25, s33")
    a("s_lshl_b32 s26, s25, 19")
    a("s_lshl_b32 s27, s22, 11")
    a("s_add_u32 s26, s26, s27")
    a("v_lshlrev_b32 v5, 4, v2")
    a("v_add_u32 v5, s26, v5")
    a("v_lshrrev_b32 v6, 3, v2")
    a("v_and_b32 v7, 7, v2")
    a("v_bfe_u32 v8, v6, 1, 1")
    a("v_lshlrev_b32 v8, 2, v8")
    a("v_xor_b32 v7, v7, v8")
    a("v_lshlrev_b32 v7, 4, v7")
    a("v_lshl_add_u32 v6, v6, 10, v7")
    a("s_lshl_b32 s26, s25, 17")
    a("s_lshl_b32 s27, s23, 7")
    a("s_add_u32 s26, s26, s27")
    a("v_add_u32 v6, s26, v6")
    a("s_mul_i32 s31, s25, %d" % RS)
    a("s_waitcnt lgkmcnt(0)")
    srd(a, 16, 6, 7, 524288)
    srd(a, 36, 8, 9, 0x200000, WS_O)
    def group(s):
        for half in range(2):
            i = 2 * s + half
            a("s_add_u32 m0, s31, %d" % (1024 * i))
            a("s_mov_b32 s32, %d" % (8192 * i))
            vm.ld(s, "buffer_load_dwordx4 v6, s[16:19], s32 offen lds")
        a("s_mov_b32 s32, %d" % (65536 * s))
        for tu in range(2):
            vm.ld(s, "buffer_load_dwordx4 %s, v5, s[36:39], s32 offen offset:%d" % (vr(OF + 8 * (s % 4) + 4 * tu), 1024 * tu))
    group(0); group(1); group(2)
    srd(a, 12, 4, 5, 2097152)
    srd(a, 44, 8, 9, ST_BYTES, WS_ST)
    srd(a, 48, 10, 11, 1024)
    srd(a, 56, 52, 53, 2097152)
    a("v_lshrrev_b32 v3, 5, v2")
    a("v_and_b32 v4, 31, v2")
    a("v_lshrrev_b32 v9, 2, v0")
    a("v_and_b32 v10, 3, v0")
    a("s_lshl_b32 s26, s22, 16")
    a("s_add_u32 s26, s26, s27")
    a("v_lshlrev_b32 v12, 5, v10")
    a("v_lshl_add_u32 v11, v9, 10, v12")
    a("v_add_u32 v11, s26, v11")
    a("v_add_u32 v12, s27, v12")
    a("v_and_b32 v7, 15, v2")
    a("v_lshrrev_b32 v8, 2, v7")
    a("v_lshl_add_u32 v8, v3, 2, v8")
    a("v_lshlrev_b32 v8, 7, v8")
    a("v_and_b32 v13, 3, v7")
    a("v_lshlrev_b32 v13, 3, v13")
    a("v_bfe_u32 v14, v2, 4, 1")
    a("v_lshl_add_u32 v13, v14, 5, v13")
    a("v_bfe_u32 v14, v7, 3, 1")
    a("v_lshl_add_u32 v13, v14, 6, v13")
    a("v_add3_u32 v7, v8, v13, s31")
    a("v_xor_b32 v8, 64, v7")
    a("v_mul_u32_u24 v13, 272, v4")
    a("v_lshl_add_u32 v13, v3, 4, v13")
    a("v_add_u32 v13, s31, v13")
    a("v_mul_u32_u24 v14, 272, v9")
    a("v_lshl_add_u32 v14, v10, 6, v14")
    def mm1(s, cu, tu):
        d = ACC + 32 * cu + 16 * tu
        c = "0" if s == 0 else vr(d, 16)
        a("v_mfma_f32_32x32x16_bf16 %s, %s, %s, %s" % (vr(d, 16), vr(WFR + 8 * (s % 2) + 4 * cu), vr(OF + 8 * (s % 4) + 4 * tu), c))
    def mm(s):
        for cu in range(2):
            for tu in range(2): mm1(s, cu, tu)
    a("; @STAMP 1")
    for s in range(8):
        vm.wait(s)
        if s == 0: a("; @STAMP 2")
        if s > 0:
            a("s_waitcnt lgkmcnt(0)")
        for cu in range(2):
            b = WFR + 8 * (s % 2) + 4 * cu
            a("ds_read_b64_tr_b16 %s, v%d offset:%d" % (vr(b, 2), 7 + cu, 2048 * s))
            a("ds_read_b64_tr_b16 %s, v%d offset:%d" % (vr(b + 2, 2), 7 + cu, 2048 * s + 1024))
        if s > 0: mm(s - 1)
        if s + 3 < 8: group(s + 3)
        if s == 4:
            vm.ld(7, "buffer_load_dwordx4 %s, v11, s[12:15], 0 offen" % vr(XR))
            vm.ld(7, "buffer_load_dwordx4 %s, v11, s[12:15], 0 offen offset:16" % vr(XR + 4))
            vm.ld(7, "buffer_load_dwordx4 %s, v12, s[48:51], 0 offen" % vr(WR))
            vm.ld(7, "buffer_load_dwordx4 %s, v12, s[48:51], 0 offen offset:16" % vr(WR + 4))
            a("s_barrier")
    a("; @STAMP 3")
    a("s_waitcnt lgkmcnt(0)")
    mm(7)
    XU = 32
    for i in range(8):
        a("v_lshlrev_b32 v%d, 16, v%d" % (144 + 2 * i, XR + i))
        a("v_and_b32 v%d, 0xffff0000, v%d" % (145 + 2 * i, XR + i))
    for cu in range(2):
        for tu in range(2):
            for q in range(4):
                a("ds_write_b128 v13, %s offset:%d" % (vr(ACC + 32 * cu + 16 * tu + 4 * q), tu * 32 * 272 + cu * 128 + q * 32))
    a("v_mov_b32 v15, 0x3f803f80")
    a("s_lshl_b32 s26, s22, 6")
    a("v_add_u32 v4, s26, v9")
    a("s_lshl_b32 s26, s22, 13")
    a("v_lshlrev_b32 v1, 4, v9")
    a("v_add_u32 v1, s26, v1")
    a("s_lshl_b32 s28, s23, 10")
    a("s_add_u32 s29, s28, %d" % ST_PSF)
    a("s_mov_b32 s24, %d" % ST_PSF)
    a("v_lshl_add_u32 v3, v10, 11, v1")
    a("s_movk_i32 s30, 0xf800")
    a("v_mov_b32 v52, %s" % hx(f2u(1.0 / 512)))
    a("v_mov_b32 v53, %s" % hx(f2u(1e-5)))
    a("s_lshl_b32 s34, s25, 3")
    a("s_add_u32 s34, s34, %d" % LK)
    a("v_mov_b32 v54, s34")
    a("v_mov_b32 v55, %d" % LK)
    a("s_waitcnt lgkmcnt(0)")
    a("s_barrier")
    a("; @STAMP 4")
    for w in range(4):
        for q in range(4):
            a("ds_read_b128 %s, v14 offset:%d" % (vr(ACC + 16 * w + 4 * q), w * RS + 16 * q))
    a("ds_read_b32 v13, v55 offset:48")
    a("s_waitcnt lgkmcnt(13)")
    for i in range(0, 16, 2): pk(XU + i, 144 + i, ACC + i)
    a("s_waitcnt lgkmcnt(5)")
    for i in range(0, 16, 2): pk(ACC + 16 + i, ACC + 16 + i, ACC + 32 + i)
    a("s_waitcnt lgkmcnt(0)")
    for i in range(0, 16, 2): pk(XU + i, XU + i, ACC + 48 + i)
    for i in range(0, 16, 2): pk(XU + i, XU + i, ACC + 16 + i)
    HP = 16
    for i in range(8):
        a("v_cvt_pk_bf16_f32 v%d, v%d, v%d" % (HP + i, XU + 2 * i, XU + 1 + 2 * i))
    for i in range(8):
        c = "0" if i == 0 else None
        a("v_dot2_f32_bf16 v48, v%d, v15, %s" % (HP + i, c or "v48"))
        a("v_dot2_f32_bf16 v49, v%d, v%d, %s" % (HP + i, HP + i, c or "v49"))
        a("v_dot2_f32_bf16 v50, v%d, v%d, %s" % (HP + i, WR + i, c or "v50"))
    for perm in ("[1,0,3,2]", "[2,3,0,1]"):
        for r in (48, 49, 50):
            a("v_add_f32_dpp v%d, v%d, v%d quad_perm:%s row_mask:0xf bank_mask:0xf" % (r, r, r, perm))
    for r in (48, 49, 50): a("v_min_u32 v%d, -2, v%d" % (r, r))
    a("s_mov_b32 exec_lo, 0x11111111")
    a("s_mov_b32 exec_hi, 0x11111111")
    a("buffer_store_dwordx3 v[48:50], v1, s[44:47], s29 offen")
    a("s_mov_b64 exec, -1")
    a("; @STAMP 5")
    for i in range(8):
        a("v_lshlrev_b32 v%d, 16, v%d" % (XU + 2 * i, HP + i))
        a("v_and_b32 v%d, 0xffff0000, v%d" % (XU + 1 + 2 * i, HP + i))
    for i in range(8): a("v_min_u32 v%d, -2, v%d" % (HP + i, HP + i))
    poll(a, "K3_P1F", [("buffer_load_dwordx4 v[64:67], v3, s[44:47], s24 offen sc1", [64, 65, 66]),
                       ("buffer_load_dwordx4 v[68:71], v3, s[44:47], s24 offen offset:1024 sc1", [68, 69, 70])], 3, 72, bound=FASTN, ok="K3_P1OK")
    def slow_store():
        a("s_mov_b32 exec_lo, 0x11111111")
        a("s_mov_b32 exec_hi, 0x11111111")
        a("buffer_store_dwordx3 v[48:50], v1, s[44:47], s28 offen sc1")
        a("s_mov_b64 exec, -1")
    slow_store()
    poll(a, "K3_P1", [("buffer_load_dwordx4 v[64:67], v3, s[44:47], 0 offen sc1", [64, 65, 66]),
                      ("buffer_load_dwordx4 v[68:71], v3, s[44:47], 0 offen offset:1024 sc1", [68, 69, 70])], 3, 72)
    a("s_branch K3_P1J")
    a.flush()
    a.label("K3_P1OK")
    slow_store()
    a.flush()
    a.label("K3_P1J")
    a("; @STAMP 6")
    for r in range(3): a("v_add_f32 v%d, v%d, v%d" % (64 + r, 64 + r, 68 + r))
    for perm in ("[1,0,3,2]", "[2,3,0,1]"):
        for r in (64, 65, 66):
            a("v_add_f32_dpp v%d, v%d, v%d quad_perm:%s row_mask:0xf bank_mask:0xf" % (r, r, r, perm))
    a("v_mul_f32 v69, v52, v64")
    a("v_fma_f32 v70, v65, v52, v53")
    a("v_fma_f32 v70, -v69, v69, v70")
    a("v_max_f32 v70, v53, v70")
    a("v_rsq_f32 v70, v70")
    a("v_fma_f32 v71, -v69, v13, v66")
    a("v_mul_f32 v71, v71, v70")
    a("v_and_or_b32 v68, v71, s30, v4")
    a("v_mov_b32 v5, v68")
    a("v_mov_b32 v6, %s" % FMIN)
    top2_wave(a, (4, 8))
    a("ds_write2_b32 v54, v5, v6 offset0:0 offset1:1")
    a("v_mul_f32 v50, v69, v70")
    a("v_add_f32 v51, 1.0, v70")
    for r in (68, 69, 70, 71): a("v_min_u32 v%d, -2, v%d" % (r + 4, r))
    a("s_lshl_b32 s26, s22, 11")
    a("s_add_u32 s26, s26, %d" % ST_CAND)
    a("v_add_u32 v12, s26, v12")
    a("s_lshl_b32 s26, s22, 7")
    a("s_add_u32 s26, s26, %d" % ST_GRN)
    a("s_waitcnt lgkmcnt(0)")
    a("s_barrier")
    a("ds_read_b128 v[56:59], v55")
    a("ds_read_b128 v[60:63], v55 offset:16")
    a("s_waitcnt lgkmcnt(0)")
    top2_merge(a, 56, 57, 58, 59, 7)
    top2_merge(a, 60, 61, 62, 63, 7)
    top2_merge(a, 56, 57, 60, 61, 7)
    a("v_cmp_eq_u32 s[40:41], v68, v56")
    a("v_cmp_eq_u32 s[42:43], v68, v57")
    a("v_mov_b32 v7, 0")
    a("v_cndmask_b32 v7, 0, 1, s[42:43]")
    a("s_or_b64 s[40:41], s[40:41], s[42:43]")
    a("v_lshl_add_u32 v12, v7, 10, v12")
    a("v_lshlrev_b32 v7, 4, v7")
    a("s_mov_b64 exec, s[40:41]")
    a("s_cbranch_execz K3_NOCAND")
    a("s_cmp_lg_u32 s23, 0")
    a("s_cbranch_scc1 K3_NOGRN")
    a("s_and_b32 exec_lo, exec_lo, 0x11111111")
    a("s_and_b32 exec_hi, exec_hi, 0x11111111")
    a("buffer_store_dwordx4 v[72:75], v7, s[44:47], s26 offen sc1")
    a("s_mov_b64 exec, s[40:41]")
    a.label("K3_NOGRN")
    a("buffer_store_dwordx4 %s, v12, s[44:47], 0 offen sc1" % vr(HP))
    a("buffer_store_dwordx4 %s, v12, s[44:47], 0 offen offset:16 sc1" % vr(HP + 4))
    a.flush()
    a.label("K3_NOCAND")
    a("s_mov_b64 exec, -1")
    for i in range(16):
        a("v_fma_f32 v%d, v%d, v51, -v50" % (XU + i, XU + i))
    for i in range(8):
        a("v_cvt_pk_bf16_f32 v%d, v%d, v%d" % (24 + i, XU + 2 * i, XU + 1 + 2 * i))
    a("s_barrier")
    a("ds_read_b32 v56, v55 offset:1088")
    a("ds_read_b32 v57, v55 offset:1104")
    a("s_waitcnt lgkmcnt(0)")
    a("v_cmp_ne_u32 vcc, v68, v56")
    a("v_cmp_ne_u32 s[42:43], v68, v57")
    a("s_and_b64 exec, vcc, s[42:43]")
    a("buffer_store_dwordx4 v[24:27], v11, s[56:59], 0 offen")
    a("buffer_store_dwordx4 v[28:31], v11, s[56:59], 0 offen offset:16")
    a("s_endpgm")
    a.flush()
    a.label("K3_F")
    a("s_load_dwordx4 s[4:7], s[0:1], 32")
    a("s_load_dwordx4 s[12:15], s[0:1], 48")
    a("s_load_dwordx2 s[10:11], s[0:1], 64")
    a("s_sub_u32 s25, s33, 4")
    a("s_mul_i32 s22, s20, 22")
    a("s_add_u32 s22, s22, s21")
    a("s_lshl_b32 s23, s20, 2")
    a("s_add_u32 s23, s23, s21")
    a("s_sub_u32 s23, s23, 22")
    a("s_lshl_b32 s23, s23, 1")
    a("s_cmp_lt_u32 s22, 172")
    a("s_cselect_b32 s24, 1, 0")
    a("s_cmp_lt_u32 s21, 22")
    a("s_cselect_b32 s24, s24, 2")
    a("s_cselect_b32 s26, s22, s23")
    a("s_cmp_lt_u32 s21, 26")
    a("s_cselect_b32 s24, s24, 0")
    a("s_lshl_b32 s26, s26, 4")
    a("v_lshlrev_b32 v4, 4, v2")
    a("s_waitcnt lgkmcnt(0)")
    srd(a, 16, 4, 5, 1024)
    srd(a, 28, 6, 7, 1409024)
    srd(a, 36, 12, 13, 1409024)
    srd(a, 40, 14, 15, 1409024)
    srd(a, 44, 8, 9, ST_BYTES, WS_ST)
    srd(a, 52, 10, 11, 2097152)
    a("buffer_load_dwordx4 v[8:11], v4, s[16:19], 0 offen")
    a("v_mov_b32 v15, 0x3f803f80")
    a("v_and_b32 v3, 15, v2")
    a("v_lshrrev_b32 v13, 4, v2")
    AF = 64
    BF = 16
    a("v_cmp_eq_u32 vcc, 2, v3")
    a("v_cndmask_b32 v14, 0, v15, vcc")
    a("s_cmp_eq_u32 s24, 1")
    a("s_cselect_b32 s34, -1, 0")
    a("v_and_b32 v14, s34, v14")
    for i in range(44): a("v_mov_b32 v%d, v14" % (AF + i))
    a("s_waitcnt vmcnt(0)")
    a("v_dot2_f32_bf16 v12, v8, v15, 0")
    for i in range(1, 4): a("v_dot2_f32_bf16 v12, v%d, v15, v12" % (8 + i))
    for ror in (1, 2, 4, 8):
        a("v_add_f32_dpp v12, v12, v12 row_ror:%d row_mask:0xf bank_mask:0xf" % ror)
    for sw in ("v_permlane16_swap_b32", "v_permlane32_swap_b32"):
        a("v_mov_b32 v14, v12")
        a("%s v12, v14" % sw)
        a("v_add_f32 v12, v12, v14")
    a("v_mov_b32 v109, %d" % LK)
    a("ds_write_b32 v109, v12 offset:48")
    a("s_mul_i32 s56, s25, 11264")
    a("s_add_u32 s56, s56, %d" % LW)
    a("s_lshl_b32 s27, s25, 8")
    a("s_add_u32 s27, s27, %d" % (LK + 64))
    a("v_lshlrev_b32 v110, 4, v3")
    a("v_add_u32 v111, %d, v110" % (LK + 64))
    a("v_add_u32 v110, s27, v110")
    a("v_lshrrev_b32 v122, 1, v2")
    a("v_lshlrev_b32 v122, 7, v122")
    a("v_and_b32 v14, 1, v2")
    a("v_lshl_add_u32 v122, v14, 4, v122")
    a("v_add_u32 v122, %d, v122" % ST_GRN)
    a("v_lshrrev_b32 v8, 2, v3")
    a("v_lshl_add_u32 v8, v13, 3, v8")
    a("s_waitcnt lgkmcnt(0)")
    def winners(tag, rows):
        a("s_cmp_lg_u32 s25, 0")
        a("s_cbranch_scc1 %sW" % tag)
        a("s_mov_b32 s35, %d" % SPIN)
        a("s_mov_b32 s60, 0")
        a("s_mov_b32 s61, 1024")
        a("v_lshlrev_b32 v124, 4, v2")
        a("v_add_u32 v125, %d, v124" % ST_CAND)
        a.flush()
        a.label(tag)
        a("buffer_load_dwordx4 v[112:115], v122, s[44:47], 0 offen sc1")
        if rows:
            a("buffer_load_dwordx4 v[96:99], v125, s[44:47], s60 offen sc1")
            a("buffer_load_dwordx4 v[100:103], v125, s[44:47], s61 offen sc1")
        a("s_sub_u32 s35, s35, 1")
        a("s_mov_b32 s62, s60")
        a("s_mov_b32 s63, s61")
        a("s_waitcnt vmcnt(%d)" % (2 if rows else 0))
        a("v_max3_u32 v121, v112, v113, v114")
        a("v_max_u32 v121, v121, v115")
        a("v_cmp_eq_u32 s[64:65], -1, v121")
        a("v_mov_b32 v6, %s" % FMIN)
        a("v_cndmask_b32 v112, v112, v6, s[64:65]")
        a("v_mov_b32 v5, v112")
        top2_wave(a, (1, 2, 4, 8))
        a("v_cmp_eq_u32 vcc, v112, v5")
        a("v_cmp_eq_u32 s[58:59], v112, v6")
        a("s_ff1_i32_b64 s60, vcc")
        a("s_ff1_i32_b64 s61, s[58:59]")
        a("s_and_b32 s60, s60, 63")
        a("s_and_b32 s61, s61, 63")
        a("s_lshl_b32 s60, s60, 10")
        a("s_lshl_b32 s61, s61, 10")
        if rows:
            a("s_waitcnt vmcnt(0)")
            a("v_max3_u32 v121, v96, v97, v98")
            a("v_max3_u32 v121, v121, v99, v100")
            a("v_max3_u32 v121, v121, v101, v102")
            a("v_max_u32 v121, v121, v103")
            a("v_cmp_eq_u32 s[66:67], -1, v121")
            a("s_or_b64 s[64:65], s[64:65], s[66:67]")
            a("s_xor_b32 s62, s62, s60")
            a("s_xor_b32 s63, s63, s61")
            a("s_or_b32 s62, s62, s63")
            a("s_or_b32 s64, s64, s62")
        a("s_cmp_eq_u32 s35, 0")
        a("s_cbranch_scc1 %sX" % tag)
        a("s_cmp_lg_u64 s[64:65], 0")
        a("s_cbranch_scc1 %s" % tag)
        a.label("%sX" % tag)
        if rows:
            a("v_add_u32 v124, %d, v124" % LR)
            a("ds_write_b128 v124, v[96:99]")
            a("ds_write_b128 v124, v[100:103] offset:1024")
        a("v_cndmask_b32 v7, 0, 16, s[58:59]")
        a("s_or_b64 exec, vcc, s[58:59]")
        a("v_add_u32 v7, v7, v109")
        a("ds_write_b128 v7, v[112:115] offset:1088")
        a("s_mov_b64 exec, -1")
        a("s_waitcnt lgkmcnt(0)")
        a.flush()
        a.label("%sW" % tag)
        a("s_barrier")
    a("s_cmp_eq_u32 s24, 2")
    a("s_cbranch_scc1 K3_DOWN")
    a("s_cmp_eq_u32 s24, 1")
    a("s_cbranch_scc1 K3_FFN")
    a("s_barrier")
    a("s_barrier")
    a("s_cmp_lg_u32 s25, 0")
    a("s_cbranch_scc1 K3_END")
    a("s_barrier")
    winners("K3_P2I", False)
    a("s_endpgm")
    a.flush()
    a.label("K3_FFN")
    a("v_mul_u32_u24 v4, 2752, v2")
    a("s_mul_i32 s27, s25, %d" % (128 * 2752))
    a("s_add_u32 s27, s27, s26")
    a("v_add_u32 v4, s27, v4")
    a("s_mov_b32 s34, %d" % (64 * 2752))
    a("v_lshlrev_b32 v8, 4, v8")
    a("v_and_b32 v9, 1, v3")
    a("v_lshl_add_u32 v8, v9, 3, v8")
    a("v_bfe_u32 v9, v3, 1, 1")
    a("v_lshl_add_u32 v8, v9, 11, v8")
    a("v_add_u32 v10, s56, v8")
    a("v_lshlrev_b32 v11, 4, v13")
    a("s_lshl_b32 s27, s25, 8")
    a("s_add_u32 s27, s27, %d" % LR)
    a("v_add_u32 v11, s27, v11")
    a("v_and_b32 v9, 1, v3")
    a("v_lshl_add_u32 v11, v9, 10, v11")
    a("v_lshlrev_b32 v108, 1, v3")
    a("s_lshl_b32 s57, s26, 3")
    a("s_add_u32 s57, s57, %d" % ST_ACT)
    a("s_barrier")
    a("; @STAMP 1")
    for m in range(2):
        for u in range(2):
            a("s_add_u32 m0, s56, %d" % (2048 * m + 1024 * u))
            a("buffer_load_dwordx4 v4, s[%d:%d], %s offen lds" % (28 + 8 * m, 31 + 8 * m, "s34" if u else "0"))
    a("s_barrier")
    a("s_barrier")
    a("; @STAMP 2")
    a("s_waitcnt vmcnt(0)")
    a("; @STAMP 3")
    for s in range(4):
        a("ds_read_b64_tr_b16 %s, v10 offset:%d" % (vr(BF + 4 * s, 2), 512 * s))
        a("ds_read_b64_tr_b16 %s, v10 offset:%d" % (vr(BF + 4 * s + 2, 2), 512 * s + 64))
    winners("K3_P2F", True)
    a("; @STAMP 4")
    a("s_mov_b32 exec_lo, 0x00030003")
    a("s_mov_b32 exec_hi, 0x00030003")
    for s in range(4):
        a("ds_read_b128 %s, v11 offset:%d" % (vr(AF + 4 * s), 64 * s))
    a("s_mov_b64 exec, -1")
    a("ds_read_b128 v[112:115], v109 offset:1088")
    a("ds_read_b128 v[116:119], v109 offset:1104")
    a("; @STAMP 5")
    a("s_waitcnt lgkmcnt(0)")
    for s in range(4):
        a("v_mfma_f32_16x16x32_bf16 v[40:43], %s, %s, %s" % (vr(AF + 4 * s), vr(BF + 4 * s), "0" if s == 0 else "v[40:43]"))
    a("s_mov_b64 exec, 0xffff")
    a("ds_write_b128 v110, v[40:43]")
    a("s_mov_b64 exec, -1")
    a("s_waitcnt lgkmcnt(0)")
    a("s_barrier")
    a("s_cmp_lg_u32 s25, 0")
    a("s_cbranch_scc1 K3_END")
    for w in range(4):
        a("ds_read_b128 %s, v111 offset:%d" % (vr(44 + 4 * w), 256 * w))
    a("s_waitcnt lgkmcnt(0)")
    pk(44, 44, 48); pk(52, 52, 56); pk(46, 46, 50); pk(54, 54, 58)
    pk(44, 44, 52); pk(46, 46, 54)
    for t in range(2):
        a("v_fma_f32 v%d, -v%d, v46, v%d" % (44 + t, 113 + 4 * t, 44 + t))
    for t in range(2):
        a("v_mul_f32 v%d, v%d, v%d" % (44 + t, 114 + 4 * t, 44 + t))
    for t in range(2):
        a("v_mul_f32 v%d, %s, v%d" % (48 + t, hx(f2u(-math.log2(math.e))), 44 + t))
    for t in range(2): a("v_exp_f32 v%d, v%d" % (48 + t, 48 + t))
    for t in range(2):
        a("v_mul_f32_dpp v%d, v%d, v%d row_ror:8 row_mask:0xf bank_mask:0xf" % (50 + t, 44 + t, 44 + t))
    for t in range(2): a("v_add_f32 v%d, 1.0, v%d" % (48 + t, 48 + t))
    for t in range(2): a("v_rcp_f32 v%d, v%d" % (48 + t, 48 + t))
    for t in range(2): a("v_mul_f32 v%d, v%d, v%d" % (50 + t, 50 + t, 48 + t))
    for t in range(2):
        a("v_mov_b32_dpp v%d, v%d quad_perm:[1,0,3,2] row_mask:0xf bank_mask:0xf" % (52 + t, 50 + t))
    for t in range(2):
        a("v_cvt_pk_bf16_f32 v%d, v%d, v%d" % (50 + t, 50 + t, 52 + t))
    for t in range(2):
        a("v_min_u32 v%d, -2, v%d" % (50 + t, 50 + t))
    a("s_mov_b64 exec, 0x55")
    a("buffer_store_dword v50, v108, s[44:47], s57 offen sc1")
    a("buffer_store_dword v51, v108, s[44:47], s57 offen offset:16 sc1")
    a("s_endpgm")
    a.flush()
    a.label("K3_DOWN")
    a("v_lshrrev_b32 v4, 1, v2")
    a("v_lshlrev_b32 v4, 10, v4")
    a("v_lshl_add_u32 v4, v14, 4, v4")
    a("s_lshl_b32 s27, s25, 15")
    a("s_add_u32 s27, s27, s26")
    a("v_add_u32 v4, s27, v4")
    a("v_lshlrev_b32 v8, 5, v8")
    a("v_and_b32 v9, 3, v3")
    a("v_lshl_add_u32 v8, v9, 3, v8")
    a("v_add_u32 v10, s56, v8")
    a("v_lshlrev_b32 v11, 7, v13")
    a("v_lshl_add_u32 v11, v3, 4, v11")
    a("s_lshl_b32 s27, s25, 9")
    a("s_add_u32 s27, s27, %d" % ST_ACT)
    a("v_add_u32 v11, s27, v11")
    a("v_bfe_u32 v14, v2, 4, 1")
    a("v_lshl_add_u32 v111, v14, 2, v111")
    for n in range(1, 6): a("s_mov_b32 s%d, %d" % (47 + n if n < 5 else 57, 4096 * n))
    sof = lambda k: "0" if k == 0 else ("s%d" % (47 + k) if k < 5 else "s57")
    a("s_barrier")
    for n in range(11):
        a("s_add_u32 m0, s56, %d" % (1024 * n))
        a("s_mov_b32 s34, %d" % (131072 * n))
        a("buffer_load_dwordx4 v4, s[40:43], s34 offen lds")
    a("s_barrier")
    a("s_barrier")
    a("s_waitcnt vmcnt(0)")
    for n in range(11):
        a("ds_read_b64_tr_b16 %s, v10 offset:%d" % (vr(BF + 4 * n, 2), 1024 * n))
        a("ds_read_b64_tr_b16 %s, v10 offset:%d" % (vr(BF + 4 * n + 2, 2), 1024 * n + 128))
    a("v_lshl_add_u32 v120, v14, 4, v109")
    a("v_lshlrev_b32 v123, 1, v3")
    a("v_add_u32 v123, s26, v123")
    a("v_lshl_add_u32 v108, v14, 10, v123")
    a("v_add_u32 v108, %d, v108" % LR)
    winners("K3_P2D", True)
    a("ds_read_b128 v[116:119], v120 offset:1088")
    a("ds_read_u16 v120, v108")
    for i in range(8): a("v_mov_b32 v%d, 0" % (96 + i))
    a("s_waitcnt lgkmcnt(0)")
    a("v_and_b32 v9, 0x7ff, v116")
    a("v_lshl_add_u32 v123, v9, 10, v123")
    a("v_lshlrev_b32 v120, 16, v120")
    a("v_mul_f32 v119, %s, v119" % hx(f2u(-math.log2(math.e))))
    a("v_exp_f32 v119, v119")
    a("v_sub_f32 v9, v120, v117")
    a("v_add_f32 v119, 1.0, v119")
    a("v_rcp_f32 v119, v119")
    a("v_fma_f32 v120, v9, v118, v120")
    a("s_mov_b32 exec_lo, 0x00030003")
    a("s_mov_b32 exec_hi, 0x00030003")
    a("; @STAMP 4")
    poll(a, "K3_P4D", [("buffer_load_dwordx4 %s, v11, s[44:47], %s offen offset:%d sc1" % (vr(AF + 4 * n), sof(2048 * n // 4096), (2048 * n) % 4096), range(AF + 4 * n, AF + 4 * n + 4)) for n in range(11)], 4, 121)
    a("s_mov_b64 exec, -1")
    a("; @STAMP 5")
    for n in range(11):
        d = 60 if n % 2 == 0 else 124
        a("v_mfma_f32_16x16x32_bf16 v[%d:%d], %s, %s, %s" % (d, d + 3, vr(AF + 4 * n), vr(BF + 4 * n), "0" if n < 2 else "v[%d:%d]" % (d, d + 3)))
    pk(60, 60, 124)
    a("s_mov_b64 exec, 0xffff")
    a("ds_write_b64 v110, v[60:61]")
    a("s_mov_b64 exec, -1")
    a("s_waitcnt lgkmcnt(0)")
    a("s_barrier")
    a("s_cmp_lg_u32 s25, 0")
    a("s_cbranch_scc1 K3_END")
    for w in range(4):
        a("ds_read_b32 v%d, v111 offset:%d" % (32 + w, 256 * w))
    a("s_waitcnt lgkmcnt(0)")
    a("v_add_f32 v32, v32, v33")
    a("v_add_f32 v34, v34, v35")
    a("v_add_f32 v32, v32, v34")
    a("v_fma_f32 v120, v32, v119, v120")
    a("v_cvt_pk_bf16_f32 v120, v120, v120")
    a("s_mov_b32 exec_lo, -1")
    a("s_mov_b32 exec_hi, 0")
    a("buffer_store_short v120, v123, s[52:55], 0 offen")
    a.label("K3_END")
    a("s_endpgm")
    kernel("k3_kernel", a, 256, 512, LW + 4 * 11264, 160, denorm=True)

def emit(path):
    ref = open("cdna_kernels/%s.s.ref" % NAME).read().split("\n")
    hdr = [l for l in ref if l.startswith(";") and "@launch" not in l and "Override" not in l and "grid=ceil" not in l]
    out = hdr[:]
    for k in KERNELS:
        out.append("; @launch kernel=%s grid=(%d,1,1) block=(%d,1,1) lds=%d" % (k["name"], k["grid"], k["block"], k["lds"]))
    out.append('.amdgcn_target "amdgcn-amd-amdhsa--gfx950"')
    out.append(".text")
    for k in KERNELS:
        out += [".globl %s" % k["name"], ".p2align 8", ".type %s,@function" % k["name"], "%s:" % k["name"], k["body"]]
    out.append("CODE_END:")
    out.append('.section .rodata,"a"')
    for k in KERNELS:
        nv = (k["nv"] + 3) // 4 * 4
        out += [".p2align 6", ".amdhsa_kernel %s" % k["name"],
                "  .amdhsa_next_free_vgpr %d" % nv, "  .amdhsa_next_free_sgpr %d" % k["ns"],
                "  .amdhsa_accum_offset %d" % nv, "  .amdhsa_group_segment_fixed_size 0",
                "  .amdhsa_kernarg_size 88", "  .amdhsa_user_sgpr_count 2",
                "  .amdhsa_user_sgpr_kernarg_segment_ptr 1", "  .amdhsa_system_sgpr_workgroup_id_x 1",
                ] + (["  .amdhsa_float_denorm_mode_32 3"] if k["denorm"] else []) + [".end_amdhsa_kernel"]
    open(path, "w").write("\n".join(out) + "\n")
    for k in KERNELS: print(k["name"], "lines", k["body"].count("\n"), "nops", k["nnop"])

if __name__ == "__main__":
    k1(); k2(); k3()
    emit(sys.argv[1] if len(sys.argv) > 1 else "cdna_kernels/%s.s" % NAME)
```
